```python
import torch

def _softmax(x, axis=-1):
    return torch.softmax(x, dim=axis)
def _gelu(x):
    return torch.nn.functional.gelu(x, approximate="tanh")
def _silu(x):
    return torch.nn.functional.silu(x)
def _sigmoid(x):
    return torch.sigmoid(x)
def _layernorm(x, axis=-1, eps=1e-5):
    m = x.mean(dim=axis, keepdim=True)
    v = x.var(dim=axis, keepdim=True, unbiased=False)
    return (x - m) / torch.sqrt(v + eps)
def _scatter_add(tgt, idx, src, axis=0):
    return tgt.clone().index_add_(axis, idx, src)
def _segment_sum(src, seg, n):
    out = torch.zeros((n,) + src.shape[1:], dtype=src.dtype)
    return out.index_add_(0, seg, src)
def _pad(x, pw):
    flat = tuple(v for pair in reversed(pw) for v in pair)
    return torch.nn.functional.pad(x, flat)

kernel_name = 'sequential_preLN__sliding_block__dense_activation_silu__prompt'

def setup_inputs():

    _w = (lambda a: (lambda t: t.to(torch.bfloat16) if t.is_floating_point() else t)(torch.as_tensor(a)))
    def _A_setup():
        B, S, D = 1, 2048, 640
        return {
            "x": _w((lambda *s: torch.randn(*s, dtype=torch.bfloat16) * 0.05)(B, S, D)),
            "wqkv": _w((lambda *s: torch.randn(*s, dtype=torch.bfloat16) * 0.05)(D, 3 * D)),
            "wo": _w((lambda *s: torch.randn(*s, dtype=torch.bfloat16) * 0.05)(D, D)),
        }
    _A_in = _A_setup()

    def _B_setup():
        B, S, D, F = 1, 2048, 640, 1728
        return {
            "x": _w((lambda *s: torch.randn(*s, dtype=torch.bfloat16) * 0.05)(B, S, D)),
            "w1": _w((lambda *s: torch.randn(*s, dtype=torch.bfloat16) * 3.2)(D, F) * (D ** -0.5)),
            "w2": _w((lambda *s: torch.randn(*s, dtype=torch.bfloat16) * 0.4)(F, D) * (F ** -0.5)),
        }
    _B_in = _B_setup()

    return {
        "A_x": _A_in["x"],
        "A_wqkv": _A_in["wqkv"],
        "A_wo": _A_in["wo"],
        "B_x": _B_in["x"],
        "B_w1": _B_in["w1"],
        "B_w2": _B_in["w2"],
    }

def reference(A_x, A_wqkv, A_wo, B_x, B_w1, B_w2):
    def _A_ref(x, wqkv, wo):
        B, S, D = x.shape
        H = 32; Dh = D // H; W = 256
        qkv = (lambda x, *d: x.permute(*d))((x @ wqkv).reshape(B, S, 3, H, Dh), 2, 0, 3, 1, 4)
        q, k, v = qkv[0], qkv[1], qkv[2]
        scores = torch.einsum("bhqd,bhkd->bhqk", q, k) * (Dh ** -0.5)
        idx = torch.arange(S)
        mask = (idx[:, None] - idx[None, :] >= 0) & (idx[:, None] - idx[None, :] < W)
        scores = torch.where(mask[None, None], scores, -1e9)
        p = _softmax(scores, axis=-1)
        o = torch.einsum("bhqk,bhkd->bhqd", p, v)
        return (lambda x, *d: x.permute(*d))(o, 0, 2, 1, 3).reshape(B, S, D) @ wo

    def _B_ref(x, w1, w2):
        h = torch.einsum("bsd,df->bsf", x, w1)
        h = _silu(h)
        out = torch.einsum("bsf,fd->bsd", h, w2)
        return out

    x = A_x
    h = x + _A_ref(_layernorm(x, axis=-1), A_wqkv, A_wo)
    h2 = h + _B_ref(_layernorm(h, axis=-1), B_w1, B_w2)
    return h2
```

```python
import re

def regs_of(op):
    op = op.strip()
    if op.startswith('-'): op = op[1:]
    m = re.fullmatch(r'abs\((.*)\)', op) or re.fullmatch(r'\|(.*)\|', op)
    if m: op = m.group(1)
    m = re.fullmatch(r'([vas])(\d+)', op)
    if m: return {(m.group(1), int(m.group(2)))}
    m = re.fullmatch(r'([vas])\[(\d+):(\d+)\]', op)
    if m: return {(m.group(1), i) for i in range(int(m.group(2)), int(m.group(3)) + 1)}
    if op in ('vcc', 'vcc_lo', 'vcc_hi'): return {('s', 'vcc')}
    if op in ('exec', 'exec_lo', 'exec_hi'): return {('s', 'exec')}
    if op == 'm0': return {('s', 'm0')}
    return set()

def R(kind, base, n=1):
    return f"{kind}{base}" if n == 1 else f"{kind}[{base}:{base+n-1}]"
def V(b, n=1): return R('v', b, n)
def A(b, n=1): return R('a', b, n)
def S(b, n=1): return R('s', b, n)

TRANS = ('v_exp_f32', 'v_log_f32', 'v_rcp_f32', 'v_rsq_f32', 'v_sqrt_f32', 'v_sin_f32', 'v_cos_f32', 'v_rcp_iflag_f32')
NODST_S = ('s_cmp', 's_waitcnt', 's_barrier', 's_branch', 's_cbranch', 's_nop', 's_sleep', 's_setprio', 's_endpgm', 's_bitcmp', 's_setpc')

class Ins:
    __slots__ = ('op', 'ops', 'mods', 'w', 'r', 'cls', 'passes', 'label', 'raw', 'srcc', 'srcab', 'data', 'target', 'comment')
    def __init__(self, op, ops=(), mods='', label=None, raw=None, comment=None):
        self.op, self.ops, self.mods, self.label, self.raw, self.comment = op, list(ops), mods, label, raw, comment
        self.w, self.r, self.cls, self.passes = set(), set(), None, 0
        self.srcc, self.srcab, self.data, self.target = set(), set(), set(), None
        if label is not None or raw is not None: self.cls = 'label' if label is not None else 'raw'; return
        o = [regs_of(x) for x in self.ops]
        U = lambda l: set().union(*l) if l else set()
        if op.startswith('v_mfma'):
            self.cls = 'mfma'; self.w = o[0]; self.srcab = o[1] | o[2]; self.srcc = o[3]; self.r = U(o[1:])
            self.passes = 8 if '32x32' in op else 4
        elif op.startswith('v_'):
            self.cls = 'trans' if op.split('_e32')[0].split('_e64')[0] in TRANS else 'valu'
            if op.startswith('v_permlane') and 'swap' in op: self.w = o[0] | o[1]; self.r = o[0] | o[1]
            elif op.startswith(('v_fmac', 'v_dot2c', 'v_writelane')): self.w = o[0]; self.r = U(o)
            elif op.startswith(('v_add_co', 'v_sub_co', 'v_addc_co', 'v_subb_co', 'v_mad_u64')): self.w = o[0] | o[1]; self.r = U(o[2:])
            elif op == 'v_nop': pass
            else: self.w = o[0]; self.r = U(o[1:])
            if 'dpp' in op or 'row_' in mods or 'quad_perm' in mods: self.r |= o[0]
        elif op.startswith('ds_read') or op.startswith('ds_bpermute') or op.startswith('ds_swizzle'):
            self.cls = 'dsr'; self.w = o[0]; self.r = U(o[1:])
        elif op.startswith('ds_'):
            self.cls = 'dsw'; self.r = U(o)
        elif op.startswith(('buffer_load', 'global_load')):
            if ' lds' in ' ' + mods or 'load_lds' in op: self.cls = 'dma'; self.r = U(o) | {('s', 'm0')}
            else: self.cls = 'vld'; self.w = o[0]; self.r = U(o[1:])
        elif op.startswith('buffer_store'):
            self.cls = 'vst'; self.r = U(o); self.data = o[0]
        elif op.startswith('global_store'):
            self.cls = 'vst'; self.r = U(o); self.data = o[1]
        elif op.startswith(('buffer_atomic', 'global_atomic')):
            self.cls = 'vst'; self.r = U(o)
        elif op.startswith(('buffer_wbl2', 'buffer_inv')):
            self.cls = 'vst'
        elif op.startswith(('s_load', 's_memtime', 's_memrealtime', 's_buffer_load')):
            self.cls = 'smem'; self.w = o[0]; self.r = U(o[1:])
        elif op.startswith('s_'):
            self.cls = 'salu'
            if op.startswith(NODST_S): self.r = U(o)
            else: self.w = o[0]; self.r = U(o[1:])
            if 'saveexec' in op: self.w |= {('s', 'exec')}; self.r |= {('s', 'exec')}
            if op.startswith(('s_branch', 's_cbranch')): self.target = self.ops[0]
            if op.startswith(('s_addk', 's_mulk')): self.r |= o[0]
        else:
            raise ValueError('unknown op ' + op)
    def text(self):
        if self.label is not None: return f"{self.label}:"
        if self.raw is not None: return self.raw
        t = "  " + self.op
        if self.ops: t += " " + ", ".join(self.ops)
        if self.mods: t += " " + self.mods
        if self.comment: t += "  ; " + self.comment
        return t
    def states(self):
        if self.cls in ('label', 'raw'): return 0
        if self.op == 's_nop': return int(self.ops[0]) + 1
        return 1

class Asm:
    def __init__(self):
        self.ins = []
        self.vmq = []
        self.lgq = []
        self.nid = 0
        self.auto = True
    def _push(self, i): self.ins.append(i); return i
    def label(self, name): self._push(Ins(None, label=name))
    def raw(self, t): self._push(Ins(None, raw=t))
    def comment(self, t): self._push(Ins(None, raw="  ; " + t))
    def waitcnt(self, vm=None, lg=None):
        parts = []
        if vm is not None:
            vm = min(vm, 63); parts.append(f"vmcnt({vm})")
            if len(self.vmq) > vm: self.vmq = self.vmq[len(self.vmq) - vm:] if vm else []
        if lg is not None:
            lg = min(lg, 15); parts.append(f"lgkmcnt({lg})")
            if lg == 0: self.lgq = []
            elif len(self.lgq) > lg:
                assert not any(e[2] for e in self.lgq), "counted lgkm wait with SMEM outstanding"
                self.lgq = self.lgq[len(self.lgq) - lg:]
        self._push(Ins('s_waitcnt', [], " ".join(parts)))
    def wait_tok(self, tok):
        ids = [e[0] for e in self.vmq]
        if tok in ids: self.waitcnt(vm=len(ids) - 1 - ids.index(tok))
    def wait_lg_tok(self, tok):
        ids = [e[0] for e in self.lgq]
        if tok in ids:
            if any(e[2] for e in self.lgq): self.waitcnt(lg=0)
            else: self.waitcnt(lg=len(ids) - 1 - ids.index(tok))
    def need(self, *ops):
        t = set().union(*[regs_of(x) for x in ops])
        self._autowait(t)
    def _autowait(self, touched):
        vm = lg = None
        for k in range(len(self.vmq) - 1, -1, -1):
            if self.vmq[k][1] & touched: vm = len(self.vmq) - 1 - k; break
        for k in range(len(self.lgq) - 1, -1, -1):
            if self.lgq[k][1] & touched:
                lg = 0 if any(e[2] for e in self.lgq) else len(self.lgq) - 1 - k; break
        if vm is not None or lg is not None: self.waitcnt(vm, lg)
    def I(self, op, *ops, mods='', comment=None, count=True):
        i = Ins(op, [str(x) for x in ops], mods, comment=comment)
        if self.auto: self._autowait(i.r | i.w)
        self._push(i)
        if not count: return None
        self.nid += 1
        if i.cls in ('vld', 'vst', 'dma'): self.vmq.append([self.nid, set(i.w)])
        elif i.cls in ('dsr', 'dsw'): self.lgq.append([self.nid, set(i.w), False])
        elif i.cls == 'smem': self.lgq.append([self.nid, set(i.w), True])
        return self.nid
    def __getattr__(self, name):
        if name.startswith(('v_', 's_', 'ds_', 'buffer_', 'global_')):
            return lambda *ops, **kw: self.I(name, *ops, **kw)
        raise AttributeError(name)
    def snapshot(self): return ([[e[0], set(e[1])] for e in self.vmq], [[e[0], set(e[1]), e[2]] for e in self.lgq])
    def restore(self, s): self.vmq, self.lgq = [[e[0], set(e[1])] for e in s[0]], [[e[0], set(e[1]), e[2]] for e in s[1]]

    @staticmethod
    def _need(p, c):
        n = 0
        pv = p.cls in ('valu', 'trans'); cv = c.cls in ('valu', 'trans')
        vw = {x for x in p.w if x[0] in 'va'}; sw = {x for x in p.w if x[0] == 's'}
        if pv:
            if c.cls == 'mfma' and vw & c.r: n = max(n, 2)
            if p.cls == 'trans' and cv and vw & (c.r | c.w): n = max(n, 1)
            if cv and c.op.startswith('v_permlane') and vw & c.r: n = max(n, 2)
            if cv and ('dpp' in c.op or 'row_' in c.mods or 'quad_perm' in c.mods) and vw & c.r: n = max(n, 2)
            if cv and c.op.startswith(('v_readlane', 'v_readfirstlane')) and vw & c.r: n = max(n, 1)
            if sw & c.r:
                if cv: n = max(n, 4 if c.op.startswith(('v_readlane', 'v_writelane')) else 2)
                if c.cls in ('vld', 'vst', 'dma'): n = max(n, 5)
                if c.cls in ('salu', 'smem'): n = max(n, 2)
            if c.cls == 'salu' and c.op.startswith('s_cbranch_vcc') and ('s', 'vcc') in sw: n = max(n, 2)
            if p.op.startswith('v_dot2') and vw & (c.r | c.w):
                same_acc = c.op == p.op and not (vw & set().union(*[regs_of(x) for x in c.ops[1:3]]))
                if not same_acc: n = max(n, 3)
        if p.cls == 'mfma':
            big = 12 if p.passes == 8 else 8
            if c.cls == 'mfma':
                if p.w & c.srcab: n = max(n, big)
                if p.w & c.srcc and not (p.w == c.srcc and p.passes == c.passes): n = max(n, big - 2)
                if p.w & c.w and not (p.w == c.w and p.passes == c.passes): n = max(n, big - 2)
                if p.w & c.w and not (p.w & c.srcc): n = max(n, big - 2)
            elif c.cls in ('valu', 'trans', 'vld', 'vst', 'dma', 'dsr', 'dsw'):
                if p.w & (c.r | c.w): n = max(n, big)
                if cv and p.srcc & c.w: n = max(n, 7 if p.passes == 8 else 3)
        if p.cls == 'salu' and ('s', 'm0') in p.w and c.cls == 'dma': n = max(n, 1)
        if p.cls == 'vst' and len(p.data) >= 3 and p.data & c.w: n = max(n, 2)
        return n
    def fix_hazards(self):
        MAXD = 13
        total = 0
        def maps():
            labpos = {x.label: k for k, x in enumerate(self.ins) if x.label is not None}
            brsrc = {}
            for k, x in enumerate(self.ins):
                if x.target is not None and x.target in labpos: brsrc.setdefault(labpos[x.target], []).append(k)
            return brsrc
        changed = True
        while changed:
            changed = False
            ins = self.ins
            brsrc = maps()
            k = 0
            while k < len(ins):
                c = ins[k]
                if c.cls in ('label', 'raw') or c.op in ('s_nop', 's_waitcnt'): k += 1; continue
                short = 0
                stack = [(k - 1, 0)]; seen = set()
                while stack:
                    j, d = stack.pop()
                    while j >= 0 and d < MAXD:
                        if (j, d) in seen: break
                        seen.add((j, d))
                        p = ins[j]
                        if p.label is not None:
                            for b in brsrc.get(j, []): stack.append((b, d))
                            q = j - 1
                            while q >= 0 and ins[q].cls == 'raw': q -= 1
                            if q >= 0 and ins[q].op in ('s_branch', 's_endpgm', 's_setpc_b64'): break
                            j -= 1; continue
                        if p.cls != 'raw':
                            nd = self._need(p, c)
                            if nd > d: short = max(short, nd - d)
                            d += p.states()
                        j -= 1
                if short:
                    ins.insert(k, Ins('s_nop', [str(short - 1)])); changed = True; total += short
                    brsrc = maps(); k += 1
                k += 1
        return total
    def text(self): return "\n".join(i.text() for i in self.ins) + "\n"
```

```python
import sys, math, struct
sys.path.insert(0, "gen")
from asmlib import *

NAME = "sequential_preLN__sliding_block__dense_activation_silu__prompt"

REC = 315392
OQ, OK_, OV, OO, OH, OG = 0, 40960, 81920, 122880, 163840, 204800
WOP = 0x1340000
W2P = 0x1408000
W1P = 0x1624000
STATS = 0x1860000
FLAGG = 0x1880000
FLAGL = 0x1888000
STAMPS = 0x1890000
WS_SIZE = 0x2000000
OOB = 0x80000000
assert W1P + 108 * 21 * 1024 <= STATS

LDS_SIZE = 163840
RPB = 131072
EXB = RPB + 20480
REDB = LDS_SIZE - 61440
W1_EARLY = 14
assert W1_EARLY * 7168 <= REDB

def f2u(x): return struct.unpack("<I", struct.pack("<f", x))[0]
LOG2E = 1.4426950408889634
QSCALE = (20 ** -0.5) * LOG2E
ONES = 0x3F803F80
NINF = 0xFF800000

sX, sWq, sRP, sWS, sOUT, sDBG = S(24, 4), S(28, 4), S(32, 4), S(36, 4), S(40, 4), S(44, 4)
sJ, sS, sW, sPURE = S(48), S(49), S(50), S(51)
sRB, sCT = S(22), S(23)
sT0 = 52
sA, sB, sC, sD, sE, sF = S(72), S(73), S(74), S(75), S(76), S(77)
sHI = S(78)
sW4K = S(79)
sSPIN = S(80)
sRPS = S(81)
sTT0 = S(82)
sHG = S(83)
sST0 = 84

vL, vL16 = V(1), V(2)
vHR = 4


class Gen:
    def __init__(self, **opt):
        self.o = dict(diag=False, stop=99, local=False, pf1=20, pf2=12, codepf=False)
        self.o.update(opt)
        self.a = Asm()
        self.nst = 0
        self.uid = 0

    def lab(self, p):
        self.uid += 1
        return f"L_{p}_{self.uid}"

    def stamp(self, idx=None):
        if not self.o['diag']: return
        a = self.a
        if idx is None: idx = self.nst
        self.nst = idx + 1
        a.waitcnt(lg=0)
        a.s_memrealtime(S(100, 2))
        a.s_mov_b32(S(sST0 + idx), S(100))

    def pi(self, dst, src, tmp):
        a = self.a
        a.v_lshrrev_b32(tmp, 1, src); a.v_and_b32(tmp, 4, tmp)
        a.v_lshlrev_b32(dst, 1, src); a.v_and_b32(dst, 8, dst)
        a.v_or_b32(dst, dst, tmp)
        a.v_and_b32(tmp, 0x13, src); a.v_or_b32(dst, dst, tmp)

    def poll(self, vaddr, vtmp, need, srd=sWS):
        a = self.a
        L, D = self.lab('poll'), self.lab('polld')
        a.s_mov_b32(sSPIN, 0x40000)
        a.label(L)
        a.buffer_load_dword(vtmp, vaddr, srd, 0, mods='offen sc1')
        a.waitcnt(vm=0)
        a.v_cmp_le_u32('vcc', need, vtmp)
        a.s_cmp_eq_u64('vcc', -1)
        a.s_cbranch_scc1(D)
        a.s_sub_u32(sSPIN, sSPIN, 1)
        a.s_cmp_lg_u32(sSPIN, 0)
        a.s_cbranch_scc1(L)
        a.label(D)

    def stores(self, lst):
        a = self.a
        for (op, d, vo, so, off) in lst: a.need(d, vo)
        tok = None
        if not self.o['local']:
            for (op, d, vo, so, off) in lst: tok = a.I(op, d, vo, sWS, so, mods=f'offen offset:{off} sc1')
            return tok
        Lp, Le = self.lab('stp'), self.lab('ste')
        a.s_cmp_lg_u32(sPURE, 0)
        a.s_cbranch_scc1(Lp)
        for (op, d, vo, so, off) in lst: a.I(op, d, vo, sWS, so, mods=f'offen offset:{off} sc1', count=False)
        a.s_branch(Le)
        a.label(Lp)
        for (op, d, vo, so, off) in lst: tok = a.I(op, d, vo, sWS, so, mods=f'offen offset:{off}')
        a.label(Le)
        return tok

    def publish_local(self, tok, val, vflag, vtmp):
        a = self.a
        a.v_mov_b32(vtmp, val)
        a.wait_tok(tok)
        a.waitcnt(lg=0)
        a.s_barrier()
        self.stores([('buffer_store_dword', vtmp, vflag, 0, 0)])

    def prologue(self):
        a = self.a
        a.s_cmp_ge_u32(S(2), 256)
        a.s_cbranch_scc1('L_end')
        a.s_load_dwordx16(S(4, 16), S(0, 2), 0)
        a.s_load_dwordx2(S(20, 2), S(0, 2), 64)
        if self.o['diag']:
            a.s_memrealtime(S(100, 2))
        a.v_lshrrev_b32(V(3), 6, V(0))
        a.v_and_b32(vL, 63, V(0))
        a.v_readfirstlane_b32(sW, V(3))
        a.v_lshlrev_b32(vL16, 4, vL)
        a.s_and_b32(sJ, S(2), 7)
        a.s_lshr_b32(sS, S(2), 3)
        a.s_mov_b32(sHI, 0xffff0000)
        a.s_lshl_b32(sW4K, sW, 12)
        a.s_cmp_ge_u32(sS, 15)
        a.s_cselect_b32(sA, 1, 0)
        a.s_lshl_b32(sRB, sJ, 1); a.s_add_u32(sRB, sRB, sA)
        a.s_mul_i32(sB, sA, 15); a.s_sub_u32(sCT, sS, sB)
        a.s_mul_i32(sA, sA, 5); a.s_add_u32(sA, sA, sCT); a.s_add_u32(sA, sA, sJ)
        for _ in range(2):
            a.s_cmp_ge_u32(sA, 10); a.s_cselect_b32(sB, 10, 0); a.s_sub_u32(sA, sA, sB)
        a.s_mov_b32(sF, sA)
        t, u = V(60), V(61)
        a.v_lshrrev_b32(t, 3, vL)
        a.s_lshl_b32(sA, sRB, 7); a.s_lshl_b32(sB, sW, 5); a.s_add_u32(sA, sA, sB)
        a.v_add_u32(t, sA, t)
        a.v_mul_u32_u24(t, 1280, t)
        a.v_lshrrev_b32(u, 4, vL)
        a.v_xor_b32(V(62), vL, u); a.v_and_b32(V(62), 7, V(62))
        a.v_lshl_add_u32(V(14), V(62), 4, t)
        a.v_xor_b32(V(62), 4, V(62))
        a.v_lshl_add_u32(V(15), V(62), 4, t)
        a.v_add_u32(V(15), 10240 - 1024, V(15))
        a.v_add_u32(V(16), 2 * (10240 - 1024), V(14))
        a.v_add_u32(V(17), 2 * (10240 - 1024), V(15))
        a.s_lshl_b32(sA, sW, 4)
        a.v_add_u32(t, sA, u)
        a.v_mul_u32_u24(t, 3840, t)
        a.v_lshlrev_b32(u, 2, u); a.v_xor_b32(u, vL, u); a.v_and_b32(u, 15, u)
        a.v_lshl_add_u32(t, u, 4, t)
        a.s_lshl_b32(sA, sCT, 8)
        a.v_add_u32(V(18), sA, t)
        for i in range(1, 4): a.v_add_u32(V(18 + i), i * (4 * 3840 - 1024), V(18))
        def srd(d, lo, size):
            b = int(d[2:].split(':')[0])
            a.s_mov_b32(S(b), S(lo)); a.s_mov_b32(S(b + 1), S(lo + 1)); a.s_mov_b32(S(b + 2), size); a.s_mov_b32(S(b + 3), 0x20000)
        srd(sX, 4, 2621440); srd(sWq, 6, 2457600); srd(sWS, 20, WS_SIZE); srd(sOUT, 16, 2621440); srd(sDBG, 18, 256)
        if self.o['diag']:
            a.s_mov_b32(S(sST0), S(100)); self.nst = 1
        L1, L2 = self.lab('rp1'), self.lab('rpj')
        a.s_mov_b32(S(35), 0x20000)
        a.v_lshrrev_b32(V(63), 4, vL)
        a.v_lshlrev_b32(V(63), 3, V(63))
        a.v_bfe_u32(V(62), vL, 2, 2)
        a.v_add_u32(V(63), V(63), V(62))
        a.v_and_b32(V(62), 3, vL)
        a.s_cmp_ge_u32(S(2), 148)
        a.s_cbranch_scc1(L1)
        a.s_cmp_ge_u32(S(2), 40)
        a.s_cselect_b32(S(32), S(14), S(8)); a.s_cselect_b32(S(33), S(15), S(9))
        a.s_mov_b32(S(34), 819200); a.s_cselect_b32(S(34), 2211840, S(34))
        a.s_cselect_b32(sB, 40, 0); a.s_cselect_b32(sC, 54, 20); a.s_mov_b32(sD, WOP); a.s_cselect_b32(sD, W2P, sD)
        a.s_sub_u32(sB, S(2), sB)
        a.s_and_b32(sE, sB, 1); a.s_lshr_b32(sB, sB, 1)
        a.s_mul_i32(sA, sB, 40960); a.s_mul_i32(sRPS, sE, 640); a.s_add_u32(sA, sA, sRPS)
        a.s_mul_i32(sRPS, sW, 10240); a.s_add_u32(sA, sA, sRPS)
        a.s_lshl_b32(sE, sE, 2); a.s_add_u32(sE, sE, sW); a.s_mul_i32(sE, sE, sC); a.s_add_u32(sE, sE, sB)
        a.s_mul_i32(sE, sE, 5120); a.s_add_u32(sRPS, sE, sD)
        for i in range(5):
            a.v_add_u32(t, 64 * i, vL)
            a.v_mul_u32_u24(u, 1639, t); a.v_lshrrev_b32(u, 16, u)
            a.v_mul_u32_u24(u, 640, u)
            a.v_add_u32(V(22 + i), u, vL16)
        a.v_add_u32(V(26), 4096, V(26))
        a.v_mul_u32_u24(t, 640, V(63))
        a.s_mul_i32(sB, sW, 160); a.s_add_u32(sB, sB, RPB)
        a.v_add_u32(t, sB, t)
        a.v_lshl_add_u32(V(27), V(62), 4, t)
        a.v_lshl_add_u32(V(28), V(62), 3, t)
        a.s_branch(L2)
        a.label(L1)
        a.s_mov_b32(S(32), S(12)); a.s_mov_b32(S(33), S(13)); a.s_mov_b32(S(34), 2211840)
        a.s_sub_u32(sB, S(2), 148)
        a.s_and_b32(sE, sB, 3); a.s_lshr_b32(sB, sB, 2)
        a.s_mul_i32(sA, sE, 160 * 3456); a.s_lshl_b32(sC, sB, 7); a.s_add_u32(sA, sA, sC)
        a.s_mul_i32(sC, sW, 40 * 3456); a.s_add_u32(sA, sA, sC)
        a.s_lshl_b32(sB, sB, 2); a.s_add_u32(sB, sB, sW); a.s_mul_i32(sB, sB, 21)
        a.s_mul_i32(sC, sE, 5); a.s_add_u32(sB, sB, sC); a.s_lshl_b32(sB, sB, 10); a.s_add_u32(sRPS, sB, W1P)
        a.v_lshrrev_b32(t, 3, vL); a.v_mul_u32_u24(t, 3456, t)
        a.v_and_b32(u, 7, vL)
        a.v_lshl_add_u32(V(22), u, 4, t)
        for i in range(1, 4): a.v_add_u32(V(22 + i), i * (8 * 3456 - 1024), V(22))
        a.v_add_u32(V(26), 32 * 3456, V(22))
        a.v_lshlrev_b32(t, 7, V(63))
        a.s_lshl_b32(sB, sW, 5); a.s_add_u32(sB, sB, RPB)
        a.v_add_u32(t, sB, t)
        a.v_lshl_add_u32(V(27), V(62), 3, t)
        a.s_mul_i32(sB, sE, 256 - 5120); a.s_add_u32(sB, sB, 20480)
        a.v_add_u32(t, sB, vL16)
        a.v_mov_b32(u, OOB)
        a.v_cmp_gt_u32('vcc', 16, vL)
        a.v_cndmask_b32(V(28), u, t, 'vcc')
        a.label(L2)
        a.s_lshl_b32(sB, S(2), 7); a.s_add_u32(sB, sB, FLAGG)
        a.v_lshlrev_b32(t, 15, V(0)); a.v_add_u32(t, sB, t)
        a.v_mov_b32(u, OOB)
        a.v_cmp_gt_u32('vcc', 2, V(0))
        a.v_cndmask_b32(t, u, t, 'vcc')
        a.v_mov_b32(V(62), 0)
        a.buffer_store_dword(V(62), t, sWS, 0, mods='offen sc1')
        a.s_mul_i32(sB, sW, 5120)
        a.s_add_u32('m0', sB, RPB)
        for i in range(4): a.buffer_load_dwordx4(V(22 + i), sRP, sA, mods=f'offen offset:{1024*i} lds')
        a.s_add_u32('m0', sB, RPB + 4096)
        self.tok_rp = a.buffer_load_dwordx4(V(26), sRP, sA, mods='offen lds')

    def chunk_offsets(self, c):
        a = self.a
        a.s_lshl_b32(S(sT0 + 2 * c), sF, 7)
        a.s_mul_i32(S(sT0 + 2 * c + 1), sF, 245760)
        if c < 9:
            a.s_add_u32(sF, sF, 1); a.s_cmp_eq_u32(sF, 10); a.s_cselect_b32(sF, 0, sF)

    def dma_chunk(self, c):
        a = self.a; slot = (c % 4) * 32768; out = []
        def mk(part, i):
            def f():
                if i == 0: a.s_add_u32('m0', sW4K, slot + part * 16384)
                return a.buffer_load_dwordx4(V((14, 18)[part] + i), (sX, sWq)[part], S(sT0 + 2 * c + part), mods=f'offen offset:{1024*i} lds')
            return f
        return [mk(p, i) for p in range(2) for i in range(4)]

    def repack(self):
        a = self.a
        L1, L2 = self.lab('rq1'), self.lab('rqj')
        F = 160
        a.s_cmp_ge_u32(S(2), 148)
        a.s_cbranch_scc1(L1)
        snap = a.snapshot()
        for t in range(5):
            for jj in range(2):
                off = jj * 2560 + (64 * (t // 2) + 8 * (t % 2) if t < 4 else 128)
                a.ds_read_b64_tr_b16(V(F + 4 * t + 2 * jj, 2), V(27) if t < 4 else V(28), mods=f'offset:{off}')
        a.waitcnt(lg=0)
        a.v_mov_b32(V(28), OOB)
        a.s_branch(L2)
        a.label(L1)
        a.restore(snap)
        for i in range(5):
            for jj in range(2):
                a.ds_read_b64_tr_b16(V(F + 4 * i + 2 * jj, 2), V(27), mods=f'offset:{i*4096 + jj*512}')
        a.waitcnt(lg=0)
        a.label(L2)
        for r in range(4): a.v_mov_b32(V(180 + r), ONES)
        a.v_add_u32(V(29), 4096, vL16)
        for i in range(5):
            a.v_mfma_f32_16x16x32_bf16(V(184, 4), V(180, 4), V(F + 4 * i, 4), V(184, 4) if i else 0)
            if i < 4: a.buffer_store_dwordx4(V(F + 4 * i, 4), vL16, sWS, sRPS, mods=f'offen offset:{1024*i} sc1')
            else: a.buffer_store_dwordx4(V(F + 4 * i, 4), V(29), sWS, sRPS, mods='offen sc1')
        a.v_mov_b32(V(190), 0); a.v_mov_b32(V(191), 0)
        a.v_cvt_pk_bf16_f32(V(189), V(184), V(190))
        a.v_lshlrev_b32(V(185), 16, V(189))
        a.v_sub_f32(V(185), V(184), V(185))
        a.v_cvt_pk_bf16_f32(V(188), V(184), V(185))
        return a.buffer_store_dwordx4(V(188, 4), V(28), sWS, sRPS, mods='offen sc1')

    def dbg_byte(self):
        a = self.a
        a.buffer_store_byte(V(57), V(58), sDBG, 0, mods='offen sc1')

    def dbg_byte_setup(self):
        a = self.a
        a.s_getreg_b32(sA, 'hwreg(HW_REG_XCC_ID, 0, 4)')
        a.s_or_b32(sA, sA, 0x80)
        a.v_mov_b32(V(57), sA)
        a.v_mov_b32(V(58), S(2)); a.v_mov_b32(V(59), OOB)
        a.v_cmp_eq_u32('vcc', 0, V(0))
        a.v_cndmask_b32(V(58), V(59), V(58), 'vcc')

    def p1(self):
        a = self.a
        XA, WA = 192, 208
        SEL, RS, CS, SQ, TM = 40, 44, 48, 52, 54
        XF, WF, ACC = 64, 80, 96
        a.s_cmp_ge_u32(sS, 30)
        a.s_cbranch_scc1('L_helper')
        snap_h = a.snapshot()
        toks = {}
        for c in range(4):
            self.chunk_offsets(c)
            for f in self.dma_chunk(c): toks[c] = f()
        for c in range(4, 10): self.chunk_offsets(c)
        self.dbg_byte_setup()
        t, u, p, h = V(60), V(61), V(62), V(63)
        self.pi(p, vL, t)
        a.v_lshrrev_b32(h, 5, vL)
        a.v_bfe_u32(t, p, 1, 3); a.v_xor_b32(t, t, h)
        a.v_lshlrev_b32(t, 4, t); a.v_lshl_add_u32(t, p, 7, t)
        a.v_add_u32(t, sW4K, t)
        for ss in range(4):
            a.v_xor_b32(V(XA + ss), 32 * ss, t)
            a.v_xor_b32(V(XA + 4 + ss), 4096, V(XA + ss))
        for k in range(8): a.v_add_u32(V(XA + 8 + k), 65536, V(XA + k))
        a.v_bfe_u32(t, vL, 2, 2)
        a.s_and_b32(sA, sW, 1); a.s_lshl_b32(sA, sA, 1); a.s_lshr_b32(sB, sW, 1); a.s_add_u32(sA, sA, sB)
        a.v_xor_b32(u, sA, t); a.v_lshlrev_b32(u, 6, u)
        a.v_lshl_add_u32(t, h, 3, t); a.v_lshl_add_u32(u, t, 8, u)
        a.v_bfe_u32(t, vL, 4, 1); a.v_lshl_add_u32(u, t, 5, u)
        a.v_and_b32(t, 1, vL); a.v_lshl_add_u32(u, t, 4, u)
        a.v_bfe_u32(t, vL, 1, 1); a.v_lshl_add_u32(V(WA), t, 3, u)
        a.v_xor_b32(V(WA + 1), 64, V(WA))
        a.v_add_u32(V(WA + 2), 65536, V(WA)); a.v_add_u32(V(WA + 3), 65536, V(WA + 1))
        a.v_lshrrev_b32(t, 2, vL); a.v_xor_b32(t, t, vL); a.v_and_b32(t, 4, t)
        a.v_mov_b32(u, ONES)
        a.v_cmp_eq_u32('vcc', 0, t)
        a.v_cndmask_b32(V(SEL), 0, u, 'vcc')
        for r in range(1, 4): a.v_mov_b32(V(SEL + r), V(SEL))
        a.v_mov_b32(V(SQ), 0); a.v_mov_b32(V(SQ + 1), 0)
        a.v_lshlrev_b32(V(32), 2, p); a.v_mov_b32(V(33), h)
        a.s_lshl_b32(sB, sW, 7); a.s_add_u32(sB, sB, EXB); a.v_add_u32(V(30), sB, V(32))
        a.s_lshl_b32(sB, sA, 7); a.s_add_u32(sB, sB, EXB + 1024); a.v_add_u32(V(31), sB, V(32))
        a.s_mov_b32(sE, sA)

        def reads(c, ss, buf):
            slot = c % 4; win = slot // 2; base = (slot % 2) * 32768
            r = []
            for f in range(2):
                r.append(lambda f=f: a.ds_read_b128(V(XF + 8 * buf + 4 * f, 4), V(XA + 8 * win + 4 * f + ss), mods=f'offset:{base}'))
                for jj in range(2):
                    r.append(lambda f=f, jj=jj: a.ds_read_b64_tr_b16(V(WF + 8 * buf + 4 * f + 2 * jj, 2), V(WA + 2 * win + f),
                                                                      mods=f'offset:{base + 16384 + ss*4096 + jj*1024}'))
            return r

        a.wait_tok(toks[0])
        a.s_barrier()
        self.stamp(1)
        tok_rps = self.repack()
        for f in reads(0, 0, 0): f()
        a.s_cmp_ge_u32(sCT, 10)
        a.s_cbranch_scc1('L_p1v')
        snap = a.snapshot()
        for var in ('qk', 'v'):
            if var == 'v':
                a.label('L_p1v'); a.restore(snap)
            tk = dict(toks)
            pend = []
            for step in range(40):
                c, ss = divmod(step, 4); buf = step % 2
                a.waitcnt(lg=0)
                nxt = []
                if ss == 3 and c < 9:
                    a.wait_tok(tk[c + 1])
                    if c == 3: a.wait_tok(tok_rps)
                    a.s_barrier()
                    if c == 3: self.dbg_byte()
                    if c + 4 < 10: pend = [(c + 4, f) for f in self.dma_chunk(c + 4)]
                if step < 39: nxt = reads((step + 1) // 4, (step + 1) % 4, buf ^ 1)
                if step == 36:
                    a.v_lshlrev_b32(V(59), 2, vL)
                    a.buffer_load_dword(V(56), V(59), sDBG, 0, mods='offen sc1')
                X = lambda f: V(XF + 8 * buf + 4 * f, 4)
                W = lambda f: V(WF + 8 * buf + 4 * f, 4)
                val = []
                for d in range(4):
                    x = V(XF + 8 * buf + d)
                    val.append(lambda x=x: a.v_lshlrev_b32(V(TM), 16, x))
                    val.append(lambda x=x: a.v_and_b32(V(TM + 1), sHI, x))
                    val.append(lambda: a.v_fmac_f32(V(SQ), V(TM), V(TM)))
                    val.append(lambda: a.v_fmac_f32(V(SQ + 1), V(TM + 1), V(TM + 1)))
                def mm(b, f):
                    d = V(ACC + 32 * b + 16 * f, 16)
                    ops = (W(b), X(f)) if var == 'qk' else (X(f), W(b))
                    a.v_mfma_f32_32x32x16_bf16(d, ops[0], ops[1], d if step else 0)
                def take(lst, n):
                    for _ in range(n):
                        if lst: lst.pop(0)()
                def dma(n):
                    for _ in range(n):
                        if pend:
                            cc, f = pend.pop(0); tk[cc] = f()
                mm(0, 0); take(nxt, 3); take(val, 2)
                mm(0, 1); take(nxt, 3); take(val, 2)
                mm(1, 0); dma(1); take(val, 4)
                mm(1, 1); dma(1); take(val, 4)
                a.v_mfma_f32_16x16x32_bf16(V(RS, 4), V(SEL, 4), X(0), V(RS, 4) if step else 0); take(val, 2)
                a.v_mfma_f32_16x16x32_bf16(V(CS, 4), V(SEL, 4), W(0), V(CS, 4) if step else 0); take(val, 2)
            self.stamp(2)
            a.v_add_f32(V(SQ), V(SQ), V(SQ + 1))
            a.v_mov_b32(V(SQ + 1), V(SQ))
            a.s_mov_b32(sA, f2u(1.0 / 640))
            a.s_cmp_lt_u32(sCT, 5); a.s_cselect_b32(sB, f2u(QSCALE), f2u(1.0))
            a.v_permlane32_swap_b32(V(SQ), V(SQ + 1))
            a.v_add_f32(V(SQ), V(SQ), V(SQ + 1))
            a.v_mul_f32(V(TM), sA, V(RS))
            a.v_mul_f32(V(TM + 1), V(TM), V(TM))
            a.v_fma_f32(V(SQ), V(SQ), sA, '-' + V(TM + 1))
            a.v_max_f32(V(SQ), 0, V(SQ))
            a.v_add_f32(V(SQ), f2u(1e-5), V(SQ))
            a.v_rsq_f32(V(SQ), V(SQ))
            a.ds_write_b32(V(31), V(CS))
            a.v_mul_f32(V(SQ), sB, V(SQ))
            a.v_mul_f32(V(TM), V(TM), V(SQ))
            a.ds_write_b32(V(30), V(SQ))
            a.ds_write_b32(V(30), V(TM), mods='offset:512')
            PR, LS, OUTP = 160, 34, 224
            a.v_lshlrev_b32(V(60), 5, V(33))
            if var == 'qk':
                a.s_lshl_b32(sB, sE, 7); a.s_add_u32(sB, sB, EXB + 1024); a.v_add_u32(V(60), sB, V(60))
                a.v_xor_b32(V(61), 128, V(60))
                a.v_xor_b32(V(62), 128, V(30))
                a.v_lshlrev_b32(V(38), 2, V(32)); a.v_lshl_add_u32(V(38), V(33), 9, V(38))
            else:
                a.s_lshl_b32(sB, sW, 7); a.s_add_u32(sB, sB, EXB); a.v_add_u32(V(60), sB, V(60))
                a.v_xor_b32(V(61), 128, V(60))
                a.v_xor_b32(V(62), 128, V(31))
                for b in range(2):
                    a.s_xor_b32(sB, sE, b); a.s_lshl_b32(sB, sB, 5)
                    a.s_sub_u32(sC, sCT, 10); a.s_lshl_b32(sC, sC, 7); a.s_add_u32(sB, sB, sC)
                    a.v_lshrrev_b32(V(63), 2, V(32)); a.v_add_u32(V(63), sB, V(63))
                    a.v_mul_u32_u24(V(38 + b), 3277, V(63)); a.v_lshrrev_b32(V(38 + b), 16, V(38 + b))
                    a.v_mul_u32_u24(V(38 + b), 960, V(38 + b))
                    a.v_lshl_add_u32(V(38 + b), V(63), 4, V(38 + b))
                    a.v_mul_u32_u24(V(63), 320, V(33)); a.v_add_u32(V(38 + b), V(38 + b), V(63))
            for f in range(2):
                a.s_xor_b32(sB, sW, f); a.s_lshl_b32(sC, sRB, 2); a.s_add_u32(sB, sB, sC); a.s_mul_i32(sB, sB, REC)
                if var == 'qk':
                    for b in range(2):
                        a.s_xor_b32(sC, sE, b); a.s_lshl_b32(sC, sC, 11); a.s_lshl_b32(sD, sCT, 13)
                        a.s_add_u32(sC, sC, sD); a.s_add_u32(S(sT0 + 2 * b + f), sB, sC)
                else:
                    a.s_add_u32(S(sT0 + f), sB, OV)
            a.waitcnt(lg=0)
            a.s_barrier()
            if var == 'qk':
                for f in range(2):
                    ad = V(30) if f == 0 else V(62)
                    a.ds_read_b32(V(LS + 2 * f), ad); a.ds_read_b32(V(LS + 2 * f + 1), ad, mods='offset:512')
                for b in range(2):
                    for k in range(4):
                        a.ds_read_b128(V(PR + 16 * b + 4 * k, 4), V(60 + b), mods=f'offset:{(k//2)*64 + (k%2)*16}')
            else:
                a.ds_read_b32(V(LS), V(31)); a.ds_read_b32(V(LS + 1), V(62))
                for f in range(2):
                    for arr in range(2):
                        for k in range(4):
                            a.ds_read_b128(V(PR + 32 * f + 16 * arr + 4 * k, 4), V(60 + f), mods=f'offset:{arr*512 + (k//2)*64 + (k%2)*16}')
            n = 0
            order = [(b, f) for b in range(2) for f in range(2)] if var == 'qk' else [(b, f) for f in range(2) for b in range(2)]
            for (b, f) in order:
                acc = ACC + 32 * b + 16 * f
                for s2 in range(2):
                    o = OUTP + 4 * (n % 8); n += 1
                    for k in range(4):
                        r = 8 * s2 + 2 * k; tmp = V(64 + 2 * k, 2)
                        if var == 'qk':
                            a.v_pk_mul_f32(tmp, V(PR + 16 * b + r, 2), V(LS + 2 * f, 2), mods='op_sel:[0,1] op_sel_hi:[1,1]')
                            a.v_pk_fma_f32(tmp, V(acc + r, 2), V(LS + 2 * f, 2), tmp, mods='op_sel:[0,0,0] op_sel_hi:[1,0,1] neg_lo:[0,0,1] neg_hi:[0,0,1]')
                        else:
                            a.v_pk_mul_f32(tmp, V(PR + 32 * f + 16 + r, 2), V(LS, 2), mods=f'op_sel:[0,{b}] op_sel_hi:[1,{b}]')
                            a.v_pk_fma_f32(tmp, V(acc + r, 2), V(PR + 32 * f + r, 2), tmp, mods='neg_lo:[0,0,1] neg_hi:[0,0,1]')
                    for k in range(4):
                        a.v_cvt_pk_bf16_f32(V(o + k), V(64 + 2 * k), V(65 + 2 * k))
                    if var == 'qk':
                        tok = a.buffer_store_dwordx4(V(o, 4), V(38), sWS, S(sT0 + 2 * b + f), mods=f'offen offset:{1024*s2} sc1')
                    else:
                        tok = a.buffer_store_dwordx4(V(o, 4), V(38 + b), sWS, S(sT0 + f), mods=f'offen offset:{640*s2} sc1')
            a.s_branch('L_p1j')
        snap_j = a.snapshot()
        a.label('L_helper')
        a.restore(snap_h)
        self.dbg_byte_setup()
        a.waitcnt(vm=0)
        a.s_barrier()
        self.repack()
        a.waitcnt(vm=0)
        a.s_barrier()
        self.dbg_byte()
        a.v_lshlrev_b32(V(59), 2, vL)
        a.v_mov_b32(V(56), 0)
        a.waitcnt(vm=0, lg=0)
        a.label('L_p1j')
        a.restore(snap_j)
        self.tok_p1 = tok
        self.stamp(3)

    def table_check(self):
        a = self.a
        L, D = self.lab('tab'), self.lab('tabd')
        a.s_mov_b32(sA, 0x80808080)
        a.s_mov_b32(sSPIN, 0x40000)
        a.need(V(56))
        a.label(L)
        a.v_and_b32(V(57), sA, V(56))
        a.v_cmp_eq_u32('vcc', sA, V(57))
        a.s_cmp_eq_u64('vcc', -1)
        a.s_cbranch_scc1(D)
        a.buffer_load_dword(V(56), V(59), sDBG, 0, mods='offen sc1', count=False)
        a.I('s_waitcnt', mods='vmcnt(0)')
        a.s_sub_u32(sSPIN, sSPIN, 1)
        a.s_cmp_lg_u32(sSPIN, 0)
        a.s_cbranch_scc1(L)
        a.label(D)
        a.v_readlane_b32(sA, V(56), 0); a.v_readlane_b32(sB, V(56), 1)
        a.v_cmp_eq_u32(S(100, 2), sA, V(56))
        a.v_cmp_eq_u32('vcc', sB, V(56))
        a.s_mov_b32(sA, 0x55555555); a.s_mov_b32(sB, 0x55555555)
        a.s_and_b64(S(100, 2), S(100, 2), S(72, 2))
        a.s_andn2_b64('vcc', 'vcc', S(72, 2))
        a.s_or_b64('vcc', 'vcc', S(100, 2))
        a.s_cmp_eq_u64('vcc', -1)
        a.s_cselect_b32(sPURE, 1, 0)

    def prefetch_lists(self):
        a = self.a
        sWo, sW1, sW2, sW2L = S(62), S(63), S(64), S(65)
        a.s_and_b32(sHG, sS, 7)
        a.s_mul_i32(sA, sHG, 102400); a.s_mul_i32(sB, sW, 25600); a.s_add_u32(sA, sA, sB); a.s_add_u32(sWo, sA, WOP)
        a.s_and_b32(sA, sS, 15); a.s_mul_i32(sA, sA, 7); a.s_min_u32(S(66), sA, 101)
        a.s_mul_i32(sA, S(66), 21 * 1024); a.s_add_u32(sW1, sA, W1P)
        a.s_mul_i32(S(67), sW, 14); a.s_min_u32(S(67), S(67), 41)
        a.s_mul_i32(sA, sHG, 54); a.s_add_u32(sA, sA, S(67)); a.s_mul_i32(sA, sA, 5120); a.s_add_u32(sW2, sA, W2P)
        a.s_cmp_ge_u32(sW, 2); a.s_cselect_b32(sW2L, OOB, sW2)
        def reg_load(dst, sbase, n):
            def f():
                a.s_add_u32(sD, sbase, (n // 4) * 4096) if n % 4 == 0 or self._last != (sbase, n // 4) else None
                self._last = (sbase, n // 4)
                return a.buffer_load_dwordx4(dst, vL16, sWS, sD, mods=f'offen offset:{(n%4)*1024} sc1')
            return f
        self._last = None
        wo = [reg_load(A(132 + 4 * n, 4), sWo, n) for n in range(25)]
        self.w2reg = [A(4 * n, 4) for n in range(64)] + [V(232 + 4 * n, 4) for n in range(6)]
        w2 = [reg_load(self.w2reg[n], sW2 if n < 65 else sW2L, n) for n in range(70)]
        def w1_load(kq, T, lo, hi):
            def f():
                if T == 0:
                    a.s_add_u32(S(68), sW, 4 * kq + lo); a.s_min_u32(S(68), S(68), hi - 1)
                    a.s_mul_i32(S(69), S(68), 7168); a.s_lshl_b32(S(68), S(68), 10); a.s_add_u32(S(68), S(68), sW1)
                a.s_add_u32('m0', S(69), T * 1024)
                a.s_add_u32(sD, S(68), T * 21 * 1024); self._last = None
                return a.buffer_load_dwordx4(vL16, sWS, sD, mods='offen sc1 lds')
            return f
        w1a = [w1_load(kq, T, 0, W1_EARLY) for kq in range((W1_EARLY + 3) // 4) for T in range(7)]
        w1b = [w1_load(kq, T, W1_EARLY, 21) for kq in range((21 - W1_EARLY + 3) // 4) for T in range(7)]
        self.pf_wo, self.pf_w2, self.pf_w1a, self.pf_w1b = wo, w2, w1a, w1b

    @staticmethod
    def take(lst, n):
        tok = None
        for _ in range(n):
            if lst: tok = lst.pop(0)()
        return tok

    def p2(self):
        a = self.a; o = self.o
        K1, K2, VV = 0, 40, 50
        Q1, Q2 = 16, 24
        MD, MF = 32, 48
        SB, PB, OA = 64, 96, 112
        vq2, vk1, vk2, vv, vfl, vflag, vo2 = V(144), V(145), V(146), V(147), V(148), V(14), V(149)
        t, u, p, h = V(150), V(151), V(152), V(153)
        self.table_check()
        self.prefetch_lists()
        pf = self.pf_wo + self.pf_w1a
        self.take(pf, o['pf1'])
        a.s_lshl_b32(sA, S(2), 7); a.s_add_u32(sA, sA, FLAGG)
        a.v_mov_b32(t, sA); a.v_mov_b32(u, OOB)
        a.v_cmp_eq_u32('vcc', 0, V(0))
        a.v_cndmask_b32(vflag, u, t, 'vcc')
        a.v_mov_b32(t, 1)
        a.wait_tok(self.tok_p1)
        a.s_barrier()
        a.buffer_store_dword(t, vflag, sWS, 0, mods='offen sc1')
        self.stamp(4)
        a.v_add_u32(vflag, FLAGL - FLAGG, vflag)
        a.s_lshr_b32(sA, sS, 3); a.s_lshl_b32(sA, sA, 1); a.s_lshl_b32(sB, sJ, 3); a.s_add_u32(sA, sA, sB)
        a.s_mul_i32(sTT0, sA, REC)
        a.s_lshl_b32(sB, sA, 5); a.s_lshl_b32(sC, sW, 4); a.s_add_u32(sB, sB, sC); a.s_mul_i32(sB, sB, 1280)
        a.s_mul_i32(sC, sHG, 160); a.s_add_u32(S(70), sB, sC)
        a.v_and_b32(t, 15, vL); a.v_mul_u32_u24(t, 1280, t); a.v_lshrrev_b32(u, 4, vL)
        a.v_lshl_add_u32(V(15), u, 4, t); a.v_lshl_add_u32(V(3), u, 3, t)
        a.buffer_load_dwordx4(V(vHR, 4), V(15), sX, S(70), mods='offen')
        a.buffer_load_dwordx4(V(vHR + 4, 4), V(15), sX, S(70), mods='offen offset:64')
        a.buffer_load_dwordx2(V(vHR + 8, 2), V(3), sX, S(70), mods='offen offset:128')
        self.take(pf, o['pf2'])
        for tt in range(10):
            a.s_add_i32(sB, sA, tt - 8); a.s_mul_i32(sC, sB, REC)
            a.s_cmp_ge_i32(sB, 0); a.s_cselect_b32(S(sT0 + tt), sC, OOB); a.s_cselect_b32(sC, ONES, 0)
            for r in range(8): a.v_accvgpr_write_b32(A(VV + 8 * tt + r), sC)
        a.s_lshl_b32(sA, sHG, 2); a.s_add_u32(sA, sA, sW)
        a.s_lshr_b32(sB, sA, 1); a.s_mul_i32(sB, sB, 2560)
        a.s_and_b32(sC, sW, 1)
        a.s_mul_i32(sE, sC, 1536); a.s_add_u32(sE, sE, sB)
        a.s_lshl_b32(sF, sC, 3); a.s_add_u32(sF, sF, sB); a.s_add_u32(sF, sF, 1024)
        self.pi(p, vL, t)
        a.v_lshrrev_b32(h, 5, vL)
        vq1 = V(154)
        a.v_add_u32(vq1, sE, vL16)
        a.v_and_b32(t, 31, vL); a.v_lshlrev_b32(t, 4, t); a.v_add_u32(vq2, sF, t)
        a.v_mov_b32(u, OOB); a.v_cmp_gt_u32('vcc', 32, vL); a.v_cndmask_b32(vo2, u, vq2, 'vcc')
        a.v_lshlrev_b32(t, 4, p); a.v_lshl_add_u32(u, h, 9, t)
        a.s_add_u32(sE, sE, OK_); a.v_add_u32(vk1, sE, u)
        a.s_mov_b32(sE, REC); a.v_mul_lo_u32(u, h, sE); a.v_add_u32(u, u, t)
        a.s_add_u32(sF, sF, OK_); a.v_add_u32(vk2, sF, u)
        a.s_lshl_b32(sE, sC, 2); a.v_add_u32(t, sE, p)
        a.s_lshl_b32(sE, sC, 4); a.v_and_b32(u, 31, vL); a.v_cmp_gt_u32('vcc', 16, u); a.v_subrev_u32(u, sE, u)
        a.v_cndmask_b32(t, u, t, 'vcc')
        a.v_mul_u32_u24(u, 320, h); a.v_lshl_add_u32(t, t, 4, u)
        a.s_mul_i32(sA, sA, 1280); a.s_add_u32(sA, sA, OV); a.v_add_u32(vv, sA, t)
        a.v_and_b32(t, 31, vL); a.v_lshlrev_b32(u, 3, h); a.v_sub_u32(t, t, u)
        a.v_mov_b32(u, NINF); a.v_mov_b32(p, 0)
        for r in range(16):
            a.v_cmp_le_i32('vcc', 16 * (r // 8) + r % 8, t)
            a.v_cndmask_b32(V(MD + r), u, p, 'vcc')
            a.v_cndmask_b32(V(MF + r), p, u, 'vcc')
        a.v_and_b32(t, 31, vL); a.v_min_u32(t, 29, t); a.v_lshlrev_b32(t, 3, t)
        a.v_sub_u32(u, sJ, h); a.v_max_i32(u, 0, u); a.v_add_u32(t, t, u)
        a.v_lshlrev_b32(t, 7, t); a.v_add_u32(vfl, FLAGG, t)
        self.poll(vfl, t, 1)
        self.stamp(5)
        a.s_add_u32(sA, sTT0, REC)
        for q in range(2):
            so = sTT0 if q == 0 else sA
            a.buffer_load_dwordx4(V(Q1 + 4 * q, 4), vq1, sWS, so, mods='offen sc1')
            a.buffer_load_dwordx2(V(Q2 + 4 * q, 2), vq2, sWS, so, mods='offen sc1')
        a.s_mov_b32(S(100), 0x000FFFFF); a.s_mov_b32(S(101), 0x000FFFFF)
        for pr in range(5):
            a.buffer_load_dwordx2(A(K2 + 2 * pr, 2), vk2, sWS, S(sT0 + 2 * pr), mods='offen sc1')
            for tt in (2 * pr, 2 * pr + 1):
                a.buffer_load_dwordx4(A(K1 + 4 * tt, 4), vk1, sWS, S(sT0 + tt), mods='offen sc1')
            a.s_mov_b64('exec', S(100, 2))
            for tt in (2 * pr, 2 * pr + 1):
                for s2 in range(2):
                    a.buffer_load_dwordx4(A(VV + 8 * tt + 4 * s2, 4), vv, sWS, S(sT0 + tt), mods=f'offen offset:{640*s2} sc1')
            a.s_mov_b64('exec', -1)
        a.v_cmp_gt_u32('vcc', 32, vL)
        for q in range(2):
            for d in range(2):
                a.v_cndmask_b32(V(Q2 + 4 * q + 2 + d), V(Q2 + 4 * q + d), p, 'vcc')
                a.v_cndmask_b32(V(Q2 + 4 * q + d), p, V(Q2 + 4 * q + d), 'vcc')
        units = [(0, 0)] + [(q, tt) for tt in range(1, 9) for q in range(2)] + [(1, 9)]
        def qk(ui, part):
            q, tt = units[ui]; d = V(SB + 16 * (ui % 2), 16)
            if part == 0:
                c = V(MF, 16) if tt == q else (V(MD, 16) if tt == q + 8 else 0)
                a.v_mfma_f32_32x32x16_bf16(d, A(K1 + 4 * tt, 4), V(Q1 + 4 * q, 4), c)
            else:
                a.v_mfma_f32_32x32x8_bf16(d, A(K2 + 2 * (tt // 2), 2), V(Q2 + 4 * q + 2 * (tt % 2), 2), d)
        def pv(ui, s2):
            q, tt = units[ui]; d = V(OA + 16 * q, 16)
            first = (tt == q and s2 == 0)
            a.v_mfma_f32_32x32x16_bf16(d, A(VV + 8 * tt + 4 * s2, 4), V(PB + 8 * (ui % 2) + 4 * s2, 4), 0 if first else d)
        qk(0, 0); qk(0, 1)
        for ui in range(18):
            sb, pb = SB + 16 * (ui % 2), PB + 8 * (ui % 2)
            def ex(r0):
                for r in range(r0, r0 + 4): a.v_exp_f32(V(sb + r), V(sb + r))
            def cv(r0):
                for r in range(r0, r0 + 4, 2): a.v_cvt_pk_bf16_f32(V(pb + r // 2), V(sb + r), V(sb + r + 1))
            if ui + 1 < 18: qk(ui + 1, 0)
            ex(0)
            if ui > 0: pv(ui - 1, 1)
            ex(4); cv(0)
            if ui + 1 < 18: qk(ui + 1, 1)
            cv(4); ex(8)
            pv(ui, 0)
            ex(12); cv(8); cv(12)
            if ui >= 8: self.take(pf, 3)
        pv(17, 1)
        self.take(pf, 99)
        self.stamp(6)
        lst = []
        a.s_add_u32(sA, sTT0, OO); a.s_add_u32(sB, sA, REC)
        for q in range(2):
            oa = OA + 16 * q
            a.v_rcp_f32(V(oa + 14), V(oa + 12))
            for r in range(0, 12, 2):
                a.v_pk_mul_f32(V(oa + r, 2), V(oa + r, 2), V(oa + 14, 2), mods='op_sel_hi:[1,0]')
            for r in range(0, 12, 2):
                a.v_cvt_pk_bf16_f32(V(SB + 8 * q + r // 2), V(oa + r), V(oa + r + 1))
            lst.append(('buffer_store_dwordx4', V(SB + 8 * q, 4), vq1, (sA, sB)[q], 0))
            lst.append(('buffer_store_dwordx2', V(SB + 8 * q + 4, 2), vo2, (sA, sB)[q], 0))
        tok = self.stores(lst)
        self.take(self.pf_w2, 8)
        self.publish_local(tok, 1, vflag, t)
        self.vflag = vflag
        self.stamp(7)

    def splitk_gemm(self, nk, wfrag, xoff, sbase_k, FR, nring, ACC, PART, last_oob, fill=None):
        a = self.a
        vx, vw, vr = V(16), V(17), V(18)
        a.v_lshrrev_b32(vx, 4, vL); a.v_lshlrev_b32(vx, 9, vx)
        a.v_and_b32(vw, 15, vL); a.v_lshl_add_u32(vx, vw, 4, vx)
        for k in range((nk + 1) // 2): a.v_add_u32(V(20 + k), 4096 * k, vx)
        for ps in range(4):
            a.s_add_u32(sA, sW, ps + 1); a.s_and_b32(sA, sA, 3)
            if ps < 3:
                a.s_mul_i32(sB, sA, 15360); a.s_add_u32(sB, sB, REDB + ps * 5120); a.v_add_u32(V(28 + ps), sB, vL16)
            a.s_lshr_b32(sB, sA, 1); a.s_mul_i32(sB, sB, REC); a.s_and_b32(sA, sA, 1); a.s_lshl_b32(sA, sA, 8)
            a.s_add_u32(sA, sA, sB); a.s_add_u32(sA, sA, sTT0); a.s_add_u32(sA, sA, xoff)
            a.s_add_u32(S(sT0 + ps), sA, sbase_k)
            if last_oob:
                a.s_cmp_ge_u32(sW, 2); a.s_cselect_b32(S(sT0 + 4 + ps), OOB, S(sT0 + ps))
        a.s_mul_i32(sB, sW, 15360); a.s_add_u32(sB, sB, REDB); a.v_add_u32(vr, sB, vL16)
        yield 'poll'
        seq = [(ps, k) for ps in range(4) for k in range(nk)]
        def ld(n):
            ps, k = seq[n]
            so = S(sT0 + 4 + ps) if (last_oob and k == nk - 1) else S(sT0 + ps)
            a.buffer_load_dwordx4(V(FR + 4 * (n % nring), 4), V(20 + k // 2), sWS, so, mods=f'offen offset:{2048*(k%2)} sc1')
        for n in range(min(nring, len(seq))): ld(n)
        yield 'loads'
        side = []
        for n, (ps, k) in enumerate(seq):
            acc = ACC + 20 * (ps % 2)
            if k == 0 and ps > 0:
                pa = ACC + 20 * ((ps - 1) % 2)
                side = [None, None, None] + [(lambda t=t, pa=pa, ps=ps: a.ds_write_b128(V(28 + ps - 1), V(pa + 4 * t, 4), mods=f'offset:{1024*t}')) for t in range(5)]
                if ps == 3:
                    def bar():
                        a.waitcnt(lg=0); a.s_barrier()
                    side += [None, bar]
                    side += [(lambda i=i: a.ds_read_b128(V(PART + 4 * i, 4), vr, mods=f'offset:{1024*i}')) for i in range(15)]
            for t in range(5):
                d = V(acc + 4 * t, 4)
                a.v_mfma_f32_16x16x32_bf16(d, wfrag(k, t), V(FR + 4 * (n % nring), 4), d if k else 0)
                if side:
                    f = side.pop(0)
                    if f: f()
                elif fill and t == 2: self.take(fill, 1)
            if n + nring < len(seq): ld(n + nring)
        while side:
            f = side.pop(0)
            if f: f()
        acc = ACC + 20
        for r in range(0, 20, 2): a.v_pk_add_f32(V(PART + r, 2), V(PART + r, 2), V(PART + 20 + r, 2))
        for r in range(0, 20, 2): a.v_pk_add_f32(V(PART + r, 2), V(PART + r, 2), V(PART + 40 + r, 2))
        for r in range(0, 20, 2): a.v_pk_add_f32(V(acc + r, 2), V(acc + r, 2), V(PART + r, 2))
        yield acc

    def unpack_res(self, dst):
        a = self.a
        for d in range(10):
            a.v_lshlrev_b32(V(dst + 2 * d), 16, V(vHR + d))
            a.v_and_b32(V(dst + 2 * d + 1), sHI, V(vHR + d))

    def p3(self):
        a = self.a
        FR, ACC, PART, RES = 32, 112, 152, 212
        a.s_mul_i32(S(71), sW, 10240)
        g = self.splitk_gemm(5, lambda k, t: A(132 + 4 * (5 * k + t), 4), OO, S(71), FR, 20, ACC, PART, False)
        next(g)
        t, u = V(FR), V(FR + 1)
        a.s_and_b32(sA, sS, 24); a.s_lshl_b32(sB, sW, 1); a.s_add_u32(sA, sA, sB)
        a.v_and_b32(t, 1, vL); a.v_add_u32(t, sA, t); a.v_lshlrev_b32(t, 3, t); a.v_add_u32(t, sJ, t)
        a.v_lshlrev_b32(t, 7, t); a.v_add_u32(t, FLAGL, t)
        self.unpack_res(RES)
        self.take(self.pf_w2, 10)
        self.poll(t, u, 1)
        self.stamp(8)
        next(g)
        self.take(self.pf_w2, 15)
        acc = next(g)
        for r in range(0, 20, 2): a.v_pk_add_f32(V(acc + r, 2), V(acc + r, 2), V(RES + r, 2))
        for d in range(10): a.v_cvt_pk_bf16_f32(V(vHR + d), V(acc + 2 * d), V(acc + 2 * d + 1))
        qa, qb_ = V(FR), V(FR + 1)
        a.s_mul_i32(sA, sHG, 5120); a.s_add_u32(sA, sA, OH - OO); a.s_add_u32(sA, sA, S(sT0 + 3)); a.s_sub_u32(sA, sA, S(71))
        a.v_lshrrev_b32(qa, 5, vL); a.v_lshlrev_b32(qa, 9, qa); a.v_bfe_u32(qb_, vL, 4, 1); a.v_lshl_add_u32(qa, qb_, 3, qa)
        a.v_and_b32(qb_, 15, vL); a.v_lshl_add_u32(qa, qb_, 4, qa); a.v_add_u32(qa, 4096, qa)
        sm, sq = FR + 4, FR + 5
        a.v_mov_b32(V(sm), 0); a.v_mov_b32(V(sq), 0); a.v_mov_b32(V(FR + 8), ONES)
        for d in range(10):
            a.v_dot2c_f32_bf16(V(sm), V(vHR + d), V(FR + 8))
            a.v_dot2c_f32_bf16(V(sq), V(vHR + d), V(vHR + d))
        for op in ('v_permlane16_swap_b32', 'v_permlane32_swap_b32'):
            a.v_mov_b32(V(sm + 2), V(sm)); a.v_mov_b32(V(sq + 2), V(sq))
            a.I(op, V(sm), V(sm + 2)); a.I(op, V(sq), V(sq + 2))
            a.v_add_f32(V(sm), V(sm), V(sm + 2)); a.v_add_f32(V(sq), V(sq), V(sq + 2))
        a.s_lshl_b32(sB, sJ, 4); a.s_lshr_b32(sC, sS, 3); a.s_lshl_b32(sC, sC, 2); a.s_add_u32(sB, sB, sC); a.s_add_u32(sB, sB, sW)
        a.s_lshl_b32(sB, sB, 10); a.s_lshr_b32(sC, sHG, 1); a.s_lshl_b32(sC, sC, 8); a.s_add_u32(sB, sB, sC)
        a.s_and_b32(sC, sHG, 1); a.s_lshl_b32(sC, sC, 3); a.s_add_u32(sB, sB, sC); a.s_add_u32(sB, sB, STATS)
        a.v_mov_b32(V(FR + 2), OOB); a.v_cmp_gt_u32('vcc', 16, vL); a.v_cndmask_b32(V(FR + 2), V(FR + 2), vL16, 'vcc')
        tok = self.stores([('buffer_store_dwordx4', V(vHR, 4), V(20), sA, 0),
                           ('buffer_store_dwordx4', V(vHR + 4, 4), V(20), sA, 2048),
                           ('buffer_store_dwordx2', V(vHR + 8, 2), qa, sA, 0),
                           ('buffer_store_dwordx2', V(sm, 2), V(FR + 2), sB, 0)])
        self.stamp(9)
        self.publish_local(tok, 2, self.vflag, V(FR + 3))
        self.tok_w1b = self.take(self.pf_w1b, 99)

    def p4(self):
        a = self.a
        NV = 32
        HF, EXT, ACC, BF, TMP, OUT = 16, 144, 152, 200, 224, 240
        NB = 6
        vds = [V(248), V(249), V(250)]; vh, al, st = V(251), 252, 254
        hreg = lambda ks, f: (V(HF + 4 * (2 * ks + f), 4) if 2 * ks + f < NV else A(224 + 4 * (2 * ks + f - NV), 4)) if ks < 20 else V(EXT + 4 * f, 4)
        t, u = V(TMP), V(TMP + 1)
        a.v_lshrrev_b32(vh, 4, vL); a.v_lshlrev_b32(vh, 9, vh); a.v_and_b32(t, 15, vL); a.v_lshl_add_u32(vh, t, 4, vh)
        for i in range(3): a.v_add_u32(vds[i], 57344 * i, vL16)
        a.s_lshl_b32(sA, sJ, 3); a.s_lshr_b32(sB, sS, 4); a.s_lshl_b32(sB, sB, 2); a.s_add_u32(sA, sA, sB); a.s_add_u32(sA, sA, sW)
        a.s_lshl_b32(sB, sA, 11); a.s_add_u32(sE, sB, STATS)
        a.s_mul_i32(sA, sA, REC)
        a.s_lshl_b32(sB, S(66), 10); a.s_add_u32(sB, sB, sA); a.s_add_u32(S(71), sB, OG)
        a.s_add_u32(sF, S(71), 4096)
        for i in range(10): a.s_add_u32(S(sT0 + i), sA, OH + 4096 * i)
        a.s_and_b32(sA, sS, 16); a.s_lshr_b32(sB, sW, 1); a.s_lshl_b32(sB, sB, 3); a.s_add_u32(sA, sA, sB)
        a.v_and_b32(t, 7, vL); a.v_add_u32(t, sA, t); a.v_lshlrev_b32(t, 3, t); a.v_add_u32(t, sJ, t)
        a.v_lshlrev_b32(t, 7, t); a.v_add_u32(t, FLAGL, t)
        self.poll(t, u, 2)
        a.s_barrier()
        self.stamp(10)
        for f in range(2): a.buffer_load_dwordx4(V(TMP + 4 * f, 4), vL16, sWS, sE, mods=f'offen offset:{1024*f} sc1')
        for ks in range(20):
            for f in range(2):
                a.buffer_load_dwordx4(hreg(ks, f), vh, sWS, S(sT0 + ks // 2), mods=f'offen offset:{256*f + 2048*(ks%2)} sc1')
        stat = []
        def S_(fn): stat.append(fn)
        for f in range(2):
            b = TMP + 4 * f; e = EXT + 4 * f
            S_(lambda b=b: a.v_add_f32(V(b), V(b), V(b + 2))); S_(lambda b=b: a.v_add_f32(V(b + 1), V(b + 1), V(b + 3)))
            for op in ('v_permlane16_swap_b32', 'v_permlane32_swap_b32'):
                S_(lambda b=b: a.v_mov_b32(V(b + 2), V(b))); S_(lambda b=b: a.v_mov_b32(V(b + 3), V(b + 1)))
                S_(None)
                S_(lambda b=b, op=op: a.I(op, V(b), V(b + 2))); S_(lambda b=b, op=op: a.I(op, V(b + 1), V(b + 3)))
                S_(lambda b=b: a.v_add_f32(V(b), V(b), V(b + 2))); S_(lambda b=b: a.v_add_f32(V(b + 1), V(b + 1), V(b + 3)))
            S_(lambda b=b: a.v_mul_f32(V(b), f2u(-1.0 / 640), V(b)))
            S_(lambda b=b: a.v_mul_f32(V(b + 1), f2u(1.0 / 640), V(b + 1)))
            S_(lambda b=b: a.v_fma_f32(V(b + 1), '-' + V(b), V(b), V(b + 1)))
            S_(lambda b=b: a.v_max_f32(V(b + 1), 0, V(b + 1)))
            S_(lambda b=b: a.v_add_f32(V(b + 1), f2u(1e-5), V(b + 1)))
            S_(lambda b=b: a.v_rsq_f32(V(b + 1), V(b + 1)))
            S_(lambda b=b, e=e: a.v_cvt_pk_bf16_f32(V(e), V(b), V(b)))
            S_(lambda b=b, f=f: a.v_mul_f32(V(al + f), f2u(-LOG2E), V(b + 1)))
            S_(lambda b=b, e=e: a.v_and_b32(V(b + 2), sHI, V(e)))
            S_(lambda b=b: a.v_sub_f32(V(b + 2), V(b), V(b + 2)))
            S_(lambda e=e: a.v_mov_b32(V(e + 2), 0)); S_(lambda e=e: a.v_mov_b32(V(e + 3), 0))
            S_(lambda b=b, e=e: a.v_cvt_pk_bf16_f32(V(e + 1), V(b + 2), V(e + 2)))
        accb = {0: 0, 1: 8, 2: 16, 3: 24, 4: 32, 5: 40, 6: 0}
        seq = [(ks, T) for ks in range(21) for T in range(4)] + [(ks, T) for T in range(4, 7) for ks in range(21)]
        def rd(n):
            ks, T = seq[n]; off = (ks * 7 + T) * 1024
            a.ds_read_b128(V(BF + 4 * (n % NB), 4), vds[off // 57344], mods=f'offset:{off % 57344}')
        toks = []
        def epi(T):
            e = []
            o = OUT + 4 * (T % 2)
            for f in range(2):
                ac = ACC + accb[T] + 4 * f; tm = TMP + 8 + 4 * f
                for c in range(4): e.append(lambda c=c, ac=ac, f=f: a.v_mul_f32(V(ac + c), V(ac + c), V(al + f)))
                for c in range(4): e.append(lambda c=c, ac=ac, tm=tm: a.v_exp_f32(V(tm + c), V(ac + c)))
                for c in range(4): e.append(lambda c=c, tm=tm: a.v_add_f32(V(tm + c), 1.0, V(tm + c)))
                for c in range(4): e.append(lambda c=c, tm=tm: a.v_rcp_f32(V(tm + c), V(tm + c)))
                for c in range(4): e.append(lambda c=c, ac=ac, tm=tm: a.v_mul_f32(V(tm + c), V(ac + c), V(tm + c)))
                for c in range(2): e.append(lambda c=c, tm=tm, f=f: a.v_cvt_pk_bf16_f32(V(o + 2 * f + c), V(tm + 2 * c), V(tm + 2 * c + 1)))
            e.append(None)
            for c in range(2): e.append(lambda c=c: a.v_permlane16_swap_b32(V(o + c), V(o + 2 + c)))
            e.append(lambda: toks.append(self.stores([('buffer_store_dwordx4', V(o, 4), vL16, S(71) if T < 4 else sF, 1024 * (T % 4))])))
            return e
        for n in range(NB - 1): rd(n)
        side = []
        w2 = self.pf_w2
        for n, (ks, T) in enumerate(seq):
            if n == 8: side = stat
            if n == 84 + 2: side = epi(0) + epi(1)
            if n == 105 + 2: side += epi(2) + epi(3)
            if n == 126 + 5: side += epi(4) + epi(5)
            if n == 126:
                while len(side) > 2 * len(epi(0)):
                    f = side.pop(0)
                    if f: f()
            if n + NB - 1 < len(seq): rd(n + NB - 1)
            per = 1 if n < 84 else (2 if n % 2 else 3)
            for f in range(2):
                d = V(ACC + accb[T] + 4 * f, 4)
                a.v_mfma_f32_16x16x32_bf16(d, V(BF + 4 * (n % NB), 4), hreg(ks, f), d if ks else 0)
                for _ in range(per):
                    if side:
                        g = side.pop(0)
                        if g: g()
            if n >= 60 and n % 3 == 0 and len(w2) > 14: self.take(w2, 1)
        while len(w2) > 14: self.take(w2, 1)
        side += epi(6)
        while side:
            g = side.pop(0)
            if g: g()
        self.stamp(11)
        self.take(w2, 8)
        self.publish_local(toks[-1], 3, self.vflag, V(TMP))
        self.take(w2, 99)

    def p5(self):
        a = self.a
        FR, NR, ACC, RES = 32, 28, 144, 184
        PART = FR
        a.s_lshl_b32(S(71), S(67), 11)
        g = self.splitk_gemm(14, lambda k, t: self.w2reg[5 * k + t], OG, S(71), FR, NR, ACC, PART, True)
        next(g)
        t, u = V(FR), V(FR + 1)
        a.s_lshl_b32(sB, sW, 2); a.s_min_u32(sB, sB, 11); a.s_and_b32(sA, sS, 16); a.s_add_u32(sA, sA, sB)
        a.s_cmp_eq_u32(sW, 3); a.s_cselect_b32(sB, 4, 3)
        a.v_min_u32(t, sB, vL); a.v_add_u32(t, sA, t); a.v_lshlrev_b32(t, 3, t); a.v_add_u32(t, sJ, t)
        a.v_lshlrev_b32(t, 7, t); a.v_add_u32(t, FLAGL, t)
        self.unpack_res(RES)
        self.poll(t, u, 3)
        self.stamp(12)
        next(g)
        acc = next(g)
        a.s_mov_b32(sA, f2u(-math.log(2.0)))
        for r in range(20): a.v_fma_f32(V(acc + r), V(acc + r), sA, V(RES + r))
        for d in range(10): a.v_cvt_pk_bf16_f32(V(vHR + d), V(acc + 2 * d), V(acc + 2 * d + 1))
        a.buffer_store_dwordx4(V(vHR, 4), V(15), sOUT, S(70), mods='offen')
        a.buffer_store_dwordx4(V(vHR + 4, 4), V(15), sOUT, S(70), mods='offen offset:64')
        a.buffer_store_dwordx2(V(vHR + 8, 2), V(3), sOUT, S(70), mods='offen offset:128')
        self.stamp(13)

    def finish(self):
        a = self.a
        if self.o['diag']:
            a.waitcnt(vm=0)
            self.stamp(14)
            a.s_lshl_b32(sA, S(2), 2); a.s_add_u32(sA, sA, sW); a.s_lshl_b32(sA, sA, 6); a.s_add_u32(sA, sA, STAMPS)
            a.s_mov_b32(S(sST0 + 15), sPURE)
            a.v_mov_b32(V(20), 0)
            for i in range(16):
                a.v_mov_b32(V(21), S(sST0 + i))
                a.buffer_store_dword(V(21), V(20), sWS, sA, mods=f'offen offset:{4*i}')
        a.label('L_end')
        a.s_endpgm()

    def build(self):
        st = self.o['stop']
        if self.o['diag']:
            for i in range(16): self.a.s_mov_b32(S(sST0 + i), 0)
            self.a.s_mov_b32(sPURE, 0)
        self.prologue()
        self.p1()
        if st >= 2: self.p2()
        if st >= 3: self.p3()
        if st >= 4: self.p4()
        if st >= 5: self.p5()
        self.finish()
        nops = self.a.fix_hazards()
        head = open("cdna_kernels/" + NAME + ".s.ref").read().split("; Override launch")[0]
        src = head + f"; @launch grid=(256,1,1) block=(256,1,1) lds={LDS_SIZE}\n"
        src += f'.amdgcn_target "amdgcn-amd-amdhsa--gfx950"\n.text\n.globl {NAME}_kernel\n.p2align 8\n.type {NAME}_kernel,@function\n{NAME}_kernel:\n'
        src += self.a.text()
        src += f""".section .rodata,"a"
.p2align 6
.amdhsa_kernel {NAME}_kernel
  .amdhsa_next_free_vgpr 512
  .amdhsa_next_free_sgpr 102
  .amdhsa_accum_offset 256
  .amdhsa_group_segment_fixed_size 0
  .amdhsa_kernarg_size 72
  .amdhsa_user_sgpr_count 2
  .amdhsa_user_sgpr_kernarg_segment_ptr 1
  .amdhsa_system_sgpr_workgroup_id_x 1
.end_amdhsa_kernel
"""
        return src, nops


if __name__ == "__main__":
    opt = {}
    out = "cdna_kernels/" + NAME + ".s"
    for x in sys.argv[1:]:
        k, v = x.split("=")
        if k == "out": out = v
        else: opt[k] = int(v)
    src, nops = Gen(**opt).build()
    open(out, "w").write(src)
    print("wrote", out, "lines", src.count("\n"), "nop states", nops)
```

```python
import re

def regs_of(op):
    op = op.strip()
    if op.startswith('-'): op = op[1:]
    m = re.fullmatch(r'abs\((.*)\)', op) or re.fullmatch(r'\|(.*)\|', op)
    if m: op = m.group(1)
    m = re.fullmatch(r'([vas])(\d+)', op)
    if m: return {(m.group(1), int(m.group(2)))}
    m = re.fullmatch(r'([vas])\[(\d+):(\d+)\]', op)
    if m: return {(m.group(1), i) for i in range(int(m.group(2)), int(m.group(3)) + 1)}
    if op in ('vcc', 'vcc_lo', 'vcc_hi'): return {('s', 'vcc')}
    if op in ('exec', 'exec_lo', 'exec_hi'): return {('s', 'exec')}
    if op == 'm0': return {('s', 'm0')}
    return set()

def R(kind, base, n=1):
    return f"{kind}{base}" if n == 1 else f"{kind}[{base}:{base+n-1}]"
def V(b, n=1): return R('v', b, n)
def A(b, n=1): return R('a', b, n)
def S(b, n=1): return R('s', b, n)

TRANS = ('v_exp_f32', 'v_log_f32', 'v_rcp_f32', 'v_rsq_f32', 'v_sqrt_f32', 'v_sin_f32', 'v_cos_f32', 'v_rcp_iflag_f32')
NODST_S = ('s_cmp', 's_waitcnt', 's_barrier', 's_branch', 's_cbranch', 's_nop', 's_sleep', 's_setprio', 's_endpgm', 's_bitcmp', 's_setpc')

class Ins:
    __slots__ = ('op', 'ops', 'mods', 'w', 'r', 'cls', 'passes', 'label', 'raw', 'srcc', 'srcab', 'data', 'target', 'comment')
    def __init__(self, op, ops=(), mods='', label=None, raw=None, comment=None):
        self.op, self.ops, self.mods, self.label, self.raw, self.comment = op, list(ops), mods, label, raw, comment
        self.w, self.r, self.cls, self.passes = set(), set(), None, 0
        self.srcc, self.srcab, self.data, self.target = set(), set(), set(), None
        if label is not None or raw is not None: self.cls = 'label' if label is not None else 'raw'; return
        o = [regs_of(x) for x in self.ops]
        U = lambda l: set().union(*l) if l else set()
        if op.startswith('v_mfma'):
            self.cls = 'mfma'; self.w = o[0]; self.srcab = o[1] | o[2]; self.srcc = o[3]; self.r = U(o[1:])
            self.passes = 8 if '32x32' in op else 4
        elif op.startswith('v_'):
            self.cls = 'trans' if op.split('_e32')[0].split('_e64')[0] in TRANS else 'valu'
            if op.startswith('v_permlane') and 'swap' in op: self.w = o[0] | o[1]; self.r = o[0] | o[1]
            elif op.startswith(('v_fmac', 'v_dot2c', 'v_writelane')): self.w = o[0]; self.r = U(o)
            elif op.startswith(('v_add_co', 'v_sub_co', 'v_addc_co', 'v_subb_co', 'v_mad_u64')): self.w = o[0] | o[1]; self.r = U(o[2:])
            elif op == 'v_nop': pass
            else: self.w = o[0]; self.r = U(o[1:])
            if 'dpp' in op or 'row_' in mods or 'quad_perm' in mods: self.r |= o[0]
        elif op.startswith('ds_read') or op.startswith('ds_bpermute') or op.startswith('ds_swizzle'):
            self.cls = 'dsr'; self.w = o[0]; self.r = U(o[1:])
        elif op.startswith('ds_'):
            self.cls = 'dsw'; self.r = U(o)
        elif op.startswith(('buffer_load', 'global_load')):
            if ' lds' in ' ' + mods or 'load_lds' in op: self.cls = 'dma'; self.r = U(o) | {('s', 'm0')}
            else: self.cls = 'vld'; self.w = o[0]; self.r = U(o[1:])
        elif op.startswith('buffer_store'):
            self.cls = 'vst'; self.r = U(o); self.data = o[0]
        elif op.startswith('global_store'):
            self.cls = 'vst'; self.r = U(o); self.data = o[1]
        elif op.startswith(('buffer_atomic', 'global_atomic')):
            self.cls = 'vst'; self.r = U(o)
        elif op.startswith(('buffer_wbl2', 'buffer_inv')):
            self.cls = 'vst'
        elif op.startswith(('s_load', 's_memtime', 's_memrealtime', 's_buffer_load')):
            self.cls = 'smem'; self.w = o[0]; self.r = U(o[1:])
        elif op.startswith('s_'):
            self.cls = 'salu'
            if op.startswith(NODST_S): self.r = U(o)
            else: self.w = o[0]; self.r = U(o[1:])
            if 'saveexec' in op: self.w |= {('s', 'exec')}; self.r |= {('s', 'exec')}
            if op.startswith(('s_branch', 's_cbranch')): self.target = self.ops[0]
            if op.startswith(('s_addk', 's_mulk')): self.r |= o[0]
        else:
            raise ValueError('unknown op ' + op)
    def text(self):
        if self.label is not None: return f"{self.label}:"
        if self.raw is not None: return self.raw
        t = "  " + self.op
        if self.ops: t += " " + ", ".join(self.ops)
        if self.mods: t += " " + self.mods
        if self.comment: t += "  ; " + self.comment
        return t
    def states(self):
        if self.cls in ('label', 'raw'): return 0
        if self.op == 's_nop': return int(self.ops[0]) + 1
        return 1

def op_cost(op):
    if op is None: return 0
    if op.startswith('v_mfma'): return 8
    if op in TRANS or op.startswith('v_permlane'): return 8
    if op.startswith('ds_write_b128'): return 20
    if op.startswith('buffer_store_dwordx4'): return 12
    if op.startswith(('v_pk_', 'v_dot2')): return 5
    return 4

class Asm:
    def __init__(self):
        self.ins = []
        self.vmq = []
        self.lgq = []
        self.nid = 0
        self.auto = True
        self.cap = None
    def _push(self, i): self.ins.append(i); return i
    def label(self, name): self._push(Ins(None, label=name))
    def raw(self, t): self._push(Ins(None, raw=t))
    def comment(self, t): self._push(Ins(None, raw="  ; " + t))
    def waitcnt(self, vm=None, lg=None):
        parts = []
        if vm is not None:
            vm = min(vm, 63); parts.append(f"vmcnt({vm})")
            if len(self.vmq) > vm: self.vmq = self.vmq[len(self.vmq) - vm:] if vm else []
        if lg is not None:
            lg = min(lg, 15); parts.append(f"lgkmcnt({lg})")
            if lg == 0: self.lgq = []
            elif len(self.lgq) > lg:
                assert not any(e[2] for e in self.lgq), "counted lgkm wait with SMEM outstanding"
                self.lgq = self.lgq[len(self.lgq) - lg:]
        self._push(Ins('s_waitcnt', [], " ".join(parts)))
    def wait_tok(self, tok):
        if isinstance(tok, list): tok = tok[-1]
        ids = [e[0] for e in self.vmq]
        if tok in ids: self.waitcnt(vm=len(ids) - 1 - ids.index(tok))
    def wait_lg_tok(self, tok):
        ids = [e[0] for e in self.lgq]
        if tok in ids:
            if any(e[2] for e in self.lgq): self.waitcnt(lg=0)
            else: self.waitcnt(lg=len(ids) - 1 - ids.index(tok))
    def need(self, *ops):
        t = set().union(*[regs_of(x) for x in ops])
        self._autowait(t)
    def _autowait(self, touched):
        vm = lg = None
        for k in range(len(self.vmq) - 1, -1, -1):
            if self.vmq[k][1] & touched: vm = len(self.vmq) - 1 - k; break
        for k in range(len(self.lgq) - 1, -1, -1):
            if self.lgq[k][1] & touched:
                lg = 0 if any(e[2] for e in self.lgq) else len(self.lgq) - 1 - k; break
        if vm is not None or lg is not None: self.waitcnt(vm, lg)
    def capture(self, fn):
        assert self.cap is None
        self.cap = []
        fn()
        raw, self.cap = self.cap, None
        units = []
        for e in raw:
            if units and e[0].startswith(('s_cselect', 's_addc', 's_subb')): units[-1].append(e)
            elif units and e[0].startswith('buffer_') and units[-1][-1][1] and units[-1][-1][1][0] == 'm0': units[-1].append(e)
            else: units.append([e])
        def mk(u):
            def f():
                t = None
                for (op, ops, kw, holder) in u:
                    t = self.I(op, *ops, **kw); holder.append(t)
                return t
            f.cost = sum(op_cost(e[0]) for e in u)
            return f
        return [mk(u) for u in units]
    def gap_used(self):
        c = 0
        for i in reversed(self.ins):
            if i.cls == 'mfma': break
            c += op_cost(i.op)
        return c
    def fill(self, q, budget):
        while q:
            f = q[0]
            if f is None: q.pop(0); return
            u = self.gap_used()
            if u + getattr(f, 'cost', 4) > budget and not (u == 0 and budget > 0): return
            q.pop(0)()
    def estimate(self, i0, i1):
        t = free = 0
        for i in self.ins[i0:i1]:
            if i.cls in ('label', 'raw'): continue
            if i.cls == 'mfma':
                t = max(t, free); free = t + 4 * i.passes; t += 8
            elif i.op.startswith(('v_pk_', 'v_dot2')): t = max(t, free + 12 if free else 0) + 5
            elif i.op == 's_nop': t += 4 * (int(i.ops[0]) + 1)
            else: t += op_cost(i.op)
        return t
    def mark(self, name): self._push(Ins(None, raw="; MARK " + name))
    def report(self):
        m = [(k, i.raw[7:]) for k, i in enumerate(self.ins) if i.raw and i.raw.startswith("; MARK ")]
        return [(n0, self.estimate(k0, k1)) for (k0, n0), (k1, n1) in zip(m, m[1:])]
    def I(self, op, *ops, mods='', comment=None, count=True):
        if self.cap is not None:
            holder = []
            self.cap.append((op, ops, dict(mods=mods, comment=comment, count=count), holder))
            return holder
        i = Ins(op, [str(x) for x in ops], mods, comment=comment)
        if self.auto: self._autowait(i.r | i.w)
        self._push(i)
        if not count: return None
        self.nid += 1
        if i.cls in ('vld', 'vst', 'dma'): self.vmq.append([self.nid, set(i.w)])
        elif i.cls in ('dsr', 'dsw'): self.lgq.append([self.nid, set(i.w), False])
        elif i.cls == 'smem': self.lgq.append([self.nid, set(i.w), True])
        return self.nid
    def __getattr__(self, name):
        if name.startswith(('v_', 's_', 'ds_', 'buffer_', 'global_')):
            return lambda *ops, **kw: self.I(name, *ops, **kw)
        raise AttributeError(name)
    def snapshot(self): return ([[e[0], set(e[1])] for e in self.vmq], [[e[0], set(e[1]), e[2]] for e in self.lgq])
    def restore(self, s): self.vmq, self.lgq = [[e[0], set(e[1])] for e in s[0]], [[e[0], set(e[1]), e[2]] for e in s[1]]

    @staticmethod
    def _need(p, c):
        n = 0
        pv = p.cls in ('valu', 'trans'); cv = c.cls in ('valu', 'trans')
        vw = {x for x in p.w if x[0] in 'va'}; sw = {x for x in p.w if x[0] == 's'}
        if pv:
            if c.cls == 'mfma' and vw & c.r: n = max(n, 2)
            if p.cls == 'trans' and cv and vw & (c.r | c.w): n = max(n, 1)
            if cv and c.op.startswith('v_permlane') and vw & c.r: n = max(n, 2)
            if cv and ('dpp' in c.op or 'row_' in c.mods or 'quad_perm' in c.mods) and vw & c.r: n = max(n, 2)
            if cv and c.op.startswith(('v_readlane', 'v_readfirstlane')) and vw & c.r: n = max(n, 1)
            if sw & c.r:
                if cv: n = max(n, 4 if c.op.startswith(('v_readlane', 'v_writelane')) else 2)
                if c.cls in ('vld', 'vst', 'dma'): n = max(n, 5)
                if c.cls in ('salu', 'smem'): n = max(n, 2)
            if c.cls == 'salu' and c.op.startswith('s_cbranch_vcc') and ('s', 'vcc') in sw: n = max(n, 2)
            if p.op.startswith('v_dot2') and vw & (c.r | c.w):
                same_acc = c.op == p.op and not (vw & set().union(*[regs_of(x) for x in c.ops[1:3]]))
                if not same_acc: n = max(n, 3)
        if p.cls == 'mfma':
            big = 12 if p.passes == 8 else 8
            if c.cls == 'mfma':
                if p.w & c.srcab: n = max(n, big)
                if p.w & c.srcc and not (p.w == c.srcc and p.passes == c.passes): n = max(n, big - 2)
                if p.w & c.w and not (p.w == c.w and p.passes == c.passes): n = max(n, big - 2)
                if p.w & c.w and not (p.w & c.srcc): n = max(n, big - 2)
            elif c.cls in ('valu', 'trans', 'vld', 'vst', 'dma', 'dsr', 'dsw'):
                if p.w & (c.r | c.w): n = max(n, big)
                if cv and p.srcc & c.w: n = max(n, 7 if p.passes == 8 else 3)
        if p.cls == 'salu' and ('s', 'm0') in p.w and c.cls == 'dma': n = max(n, 1)
        if p.cls == 'vst' and len(p.data) >= 3 and p.data & c.w: n = max(n, 2)
        return n
    def fix_hazards(self):
        MAXD = 13
        total = 0
        def maps():
            labpos = {x.label: k for k, x in enumerate(self.ins) if x.label is not None}
            brsrc = {}
            for k, x in enumerate(self.ins):
                if x.target is not None and x.target in labpos: brsrc.setdefault(labpos[x.target], []).append(k)
            return brsrc
        changed = True
        while changed:
            changed = False
            ins = self.ins
            brsrc = maps()
            k = 0
            while k < len(ins):
                c = ins[k]
                if c.cls in ('label', 'raw') or c.op in ('s_nop', 's_waitcnt'): k += 1; continue
                short = 0
                stack = [(k - 1, 0)]; seen = set()
                while stack:
                    j, d = stack.pop()
                    while j >= 0 and d < MAXD:
                        if (j, d) in seen: break
                        seen.add((j, d))
                        p = ins[j]
                        if p.label is not None:
                            for b in brsrc.get(j, []): stack.append((b, d))
                            q = j - 1
                            while q >= 0 and ins[q].cls == 'raw': q -= 1
                            if q >= 0 and ins[q].op in ('s_branch', 's_endpgm', 's_setpc_b64'): break
                            j -= 1; continue
                        if p.cls != 'raw':
                            nd = self._need(p, c)
                            if nd > d: short = max(short, nd - d)
                            d += p.states()
                        j -= 1
                if short:
                    ins.insert(k, Ins('s_nop', [str(short - 1)])); changed = True; total += short
                    brsrc = maps(); k += 1
                k += 1
        return total
    def text(self): return "\n".join(i.text() for i in self.ins) + "\n"
```

```python
import sys, math, struct
sys.path.insert(0, "gen")
from asmlib import *

NAME = "sequential_preLN__sliding_block__dense_activation_silu__prompt"

REC = 274432
OQ, OK_, OV, OO, OH, OG = 0, 40960, 81920, 0, 122880, 163840
WOP = 0x1340000
W2P = 0x1408000
W1P = 0x1624000
STATS = 0x1860000
FLAG0 = 0x1880000
FLAGG = 0x1888000
FLAGL = 0x1890000
EPOCH = 0x1898000
FLAG2 = 0x18B0000
STAMPS = 0x18A0000
RPART = 0x1900000
CPART = 0x1950000
WS_SIZE = 0x2000000
OOB = 0x80000000
assert W1P + 108 * 21 * 1024 <= STATS

LDS_SIZE = 163840
RPB = 131072
EXB = RPB + 20480
REDB = LDS_SIZE - 61440
assert REDB == 100 * 1024
def w1_slot(T, ks):
    if ks < 10: return 10 * T + ks
    if T >= 4: return 116 + 11 * (T - 4) + ks - 10
    return 70 + 7 * T + ks - 10 if ks < 17 else 100 + 4 * T + ks - 17

def f2u(x): return struct.unpack("<I", struct.pack("<f", x))[0]
LOG2E = 1.4426950408889634
QSCALE = (20 ** -0.5) * LOG2E
ONES = 0x3F803F80
NINF = 0xFF800000

sX, sWq, sRP, sWS, sOUT, sDBG = S(24, 4), S(28, 4), S(32, 4), S(36, 4), S(40, 4), S(44, 4)
sJ, sS, sW, sPURE = S(48), S(49), S(50), S(51)
sRB, sCT = S(22), S(23)
sT0 = 52
sA, sB, sC, sD, sE, sF = S(72), S(73), S(74), S(75), S(76), S(77)
sHI = S(78)
sW4K = S(79)
sSPIN = S(80)
sRPS = S(81)
sTT0 = S(82)
sHG = S(83)
sST0 = 84
sTSRC = S(6)
sPO = [S(0), S(1), S(20), S(21)]
KE, KL = [0, 1, 5, 6, 7, 8, 12, 13], [2, 3, 4, 9, 10, 11]
sTAG = S(10, 2)
vTAG = 254

vL, vL16 = V(1), V(2)
vHR = 4


class Gen:
    def __init__(self, **opt):
        self.o = dict(la=3, noep=0, forcefb=0, tfe=1, swap=1, b1=24, pre=2, s_wf=31, s_td=33, hla=2, gl=0, mix=0, operm=0, p2n=1, f2u=8, h2a=3, w2d=6, s4=30, e4=118, e4c=136, b4=32, w2s=2, w2t=2, l5=5, l5c=5, fine=0, nopf=0, rpfirst=0, w2p3=8, gt=10, c1early=0, rpc=2, padat=-1, padto=0, rot=7, p1st=0, s_pl=22, s_ck=31, pl2=2, wo1=12, p2pf=8, w1m=4, w2a=0, w2b=6, w2c=4, d3=8, d4=8, d5=8, p4pf=66, diag=False, stop=99, local=1, pf1=10, pf2=6, codepf=1)
        self.o.update(opt)
        self.a = Asm()
        self.nst = 0
        self.uid = 0
        self.ool = []
        self.cold = []
        self.nfine = 0

    def lab(self, p):
        self.uid += 1
        return f"L_{p}_{self.uid}"

    def fs(self, phase):
        if self.o['diag'] and self.o['fine'] == phase:
            self.nfine += 1
            self.stamp(self.nfine, True)

    def stamp(self, idx=None, fine=False):
        a = self.a
        if self.o['padat'] == idx:
            L = self.lab('pad')
            a.label(L)
            a.waitcnt(lg=0)
            a.s_memrealtime(S(98, 2)); a.s_sub_u32(S(98), S(98), S(96)); a.s_cmp_lt_u32(S(98), self.o['padto']); a.s_cbranch_scc1(L)
        if not self.o['diag']: return
        if self.o['fine'] and not fine and idx != 14: return
        if idx is None: idx = self.nst
        self.nst = idx + 1
        a.waitcnt(lg=0)
        if self.o['diag'] == 2:
            a.s_memtime(S(100, 2)); a.s_sub_u32(S(sST0 + idx), S(100), S(3))
        else:
            a.s_memrealtime(S(100, 2)); a.s_mov_b32(S(sST0 + idx), S(100))

    def pi(self, dst, src, tmp):
        a = self.a
        a.v_lshrrev_b32(tmp, 1, src); a.v_and_b32(tmp, 4, tmp)
        a.v_lshlrev_b32(dst, 1, src); a.v_and_b32(dst, 8, dst)
        a.v_or_b32(dst, dst, tmp)
        a.v_and_b32(tmp, 0x13, src); a.v_or_b32(dst, dst, tmp)

    def poll(self, vaddr, vtmp, off, sleep=0, pair='vcc'):
        a = self.a
        L, D = self.lab('poll'), self.lab('polld')
        a.s_mov_b32(sSPIN, 0x40000)
        a.label(L)
        a.buffer_load_dwordx2(vtmp, vaddr, sWS, 0, mods=f'offen offset:{off} sc1')
        a.waitcnt(vm=0)
        a.v_cmp_eq_u64(pair, sTAG, vtmp)
        a.s_cmp_eq_u64(pair, -1)
        a.s_cbranch_scc1(D)
        if sleep: a.s_sleep(sleep)
        a.s_sub_u32(sSPIN, sSPIN, 1)
        a.s_cmp_lg_u32(sSPIN, 0)
        a.s_cbranch_scc1(L)
        a.label(D)

    def stores(self, lst, vcc=False, wt=False):
        a = self.a
        for (op, d, vo, so, off) in lst: a.need(d, vo)
        tok = None
        if wt or not self.o['local']:
            for (op, d, vo, so, off) in lst: tok = a.I(op, d, vo, sWS, so, mods=f'offen offset:{off} sc1')
            return tok
        Lo, Le = self.lab('stw'), self.lab('ste')
        if vcc: a.s_cbranch_vccz(Lo)
        else:
            a.s_cmp_lg_u32(sPURE, 0); a.s_cbranch_scc0(Lo)
        for (op, d, vo, so, off) in lst: tok = a.I(op, d, vo, sWS, so, mods=f'offen offset:{off}')
        a.label(Le)
        def ool():
            a.label(Lo)
            for (op, d, vo, so, off) in lst: a.I(op, d, vo, sWS, so, mods=f'offen offset:{off} sc1')
            a.s_branch(Le)
        self.ool.append(ool)
        return tok

    def tagv(self, r):
        self.a.v_mov_b32(V(r), S(10)); self.a.v_mov_b32(V(r + 1), S(11))

    def publish(self, tok, off, r, vcc=False):
        self.a.wait_tok(tok)
        self.stores([('buffer_store_dwordx2', V(r, 2), self.vflag, 0, off)], vcc=vcc)

    def check(self, vaddr, vdat, off, pair='vcc'):
        a = self.a
        Lr, Lb = self.lab('ckr'), self.lab('ckb')
        a.v_cmp_eq_u64(pair, sTAG, vdat)
        a.s_cmp_eq_u64(pair, -1)
        a.s_cbranch_scc0(Lr)
        a.label(Lb)
        def ool():
            a.label(Lr); self.poll(vaddr, vdat, off, pair=pair); a.s_branch(Lb)
        self.ool.append(ool)

    def srd(self, d, lo, size):
        a = self.a
        b = int(d[2:].split(':')[0])
        a.s_mov_b32(S(b), S(lo)); a.s_mov_b32(S(b + 1), S(lo + 1)); a.s_mov_b32(S(b + 2), size); a.s_mov_b32(S(b + 3), 0x20000)

    def prologue(self):
        a = self.a
        a.s_cmp_ge_u32(S(2), 256)
        a.s_cbranch_scc1('L_end')
        a.s_load_dwordx16(S(4, 16), S(0, 2), 0)
        a.s_load_dwordx2(S(20, 2), S(0, 2), 64)
        if self.o['diag']:
            a.s_memtime(S(98, 2))
            a.s_memrealtime(S(100, 2))
        if self.o['padat'] >= 0: a.s_memrealtime(S(96, 2))
        a.v_lshrrev_b32(V(3), 6, V(0))
        a.v_and_b32(vL, 63, V(0))
        a.v_readfirstlane_b32(sW, V(3))
        a.v_lshlrev_b32(vL16, 4, vL)
        a.s_and_b32(sJ, S(2), 7)
        a.s_lshr_b32(sS, S(2), 3)
        a.s_lshl_b32(sW4K, sW, 12)
        a.s_lshr_b32(sA, sJ, 1); a.s_lshl_b32(sA, sA, 2); a.s_lshr_b32(sB, sS, 3); a.s_add_u32(sRB, sA, sB)
        a.s_and_b32(sA, sJ, 1); a.s_lshl_b32(sA, sA, 3); a.s_and_b32(sB, sS, 7); a.s_add_u32(sCT, sA, sB)
        if self.o['rot'] == 6: a.s_add_u32(sF, sRB, sCT)
        elif self.o['rot'] == 7:
            a.s_mul_i32(sA, sRB, 5); a.s_lshr_b32(sA, sA, 4); a.s_mul_i32(sB, sCT, 86); a.s_lshr_b32(sB, sB, 8); a.s_add_u32(sF, sA, sB)
        elif self.o['rot'] == 8:
            a.s_lshr_b32(sA, sRB, 1); a.s_lshr_b32(sB, sCT, 1); a.s_add_u32(sF, sA, sB)
        a.s_mul_i32(sA, sF, 52); a.s_lshr_b32(sA, sA, 8); a.s_mul_i32(sA, sA, 5); a.s_sub_u32(sF, sF, sA)
        a.s_lshl_b32(sSPIN, sF, 11)
        a.s_lshl_b32(sF, sF, 1)
        if self.o['swap']:
            a.s_xor_b32(S(47), sRB, sCT); a.s_and_b32(S(47), S(47), 1)
        else: a.s_mov_b32(S(47), 0)
        t, u = V(60), V(61)
        a.v_lshrrev_b32(t, 3, vL)
        a.s_lshl_b32(sA, sRB, 7); a.s_lshl_b32(sB, sW, 5); a.s_add_u32(sA, sA, sB)
        a.v_add_u32(t, sA, t)
        a.v_mul_u32_u24(t, 1280, t)
        a.v_lshrrev_b32(u, 4, vL)
        a.v_xor_b32(V(62), vL, u); a.v_and_b32(V(62), 7, V(62))
        a.v_lshl_add_u32(V(14), V(62), 4, t)
        a.v_xor_b32(V(62), 4, V(62))
        a.v_lshl_add_u32(V(15), V(62), 4, t)
        a.v_add_u32(V(15), 10240 - 1024, V(15))
        a.v_add_u32(V(16), 2 * (10240 - 1024), V(14))
        a.v_add_u32(V(17), 2 * (10240 - 1024), V(15))
        a.s_lshl_b32(sA, sW, 4)
        a.v_add_u32(t, sA, u)
        a.v_mul_u32_u24(t, 3840, t)
        a.v_lshlrev_b32(u, 2, u); a.v_xor_b32(u, vL, u); a.v_and_b32(u, 15, u)
        a.v_lshl_add_u32(t, u, 4, t)
        a.s_lshl_b32(sA, sCT, 8)
        a.v_add_u32(V(18), sA, t)
        for i in range(1, 4): a.v_add_u32(V(18 + i), i * (4 * 3840 - 1024), V(18))
        self.chunk_offsets(0); self.chunk_offsets(1)
        a.v_mov_b32(V(63), EPOCH)
        self.srd(sX, 4, 2621440); self.srd(sWq, 6, 2457600)
        Lh = self.lab('nold')
        a.s_cmp_eq_u32(sCT, 15)
        a.s_cbranch_scc1(Lh)
        self.toks = {}
        for f in self.dma_chunk(0): self.toks[0] = f()
        if self.o['c1early']:
            for f in self.dma_chunk(1): self.toks[1] = f()
        a.label(Lh)
        self.srd(sWS, 20, WS_SIZE)
        if self.o['noep']:
            a.v_mov_b32(V(vTAG), 5); a.v_mov_b32(V(vTAG + 1), 5)
        else: a.buffer_load_dwordx2(V(vTAG, 2), V(63), sWS, 0, mods='offen sc1')
        if self.o['codepf']:
            a.s_getpc_b64(S(100 if not self.o['diag'] else 96, 2))
            pc = 100 if not self.o['diag'] else 96
            a.label('L_pc')
            a.s_lshl_b32(sA, sS, 11)
            a.v_lshlrev_b32(V(62), 3, V(0)); a.v_add_u32(V(62), sA, V(62))
            a.v_min_u32(V(62), 'L_codeend-L_pc-4', V(62))
            a.v_mov_b32(V(249), S(pc + 1))
            a.v_add_co_u32(V(248), 'vcc', S(pc), V(62))
            a.v_addc_co_u32(V(249), 'vcc', 0, V(249), 'vcc')
            a.global_load_dword(V(248), V(248, 2), 'off')
            if self.o['diag']: a.s_mov_b32(S(96), 0); a.s_mov_b32(S(97), 0)
        self.srd(sOUT, 16, 2621440)
        a.s_mov_b32(sHI, 0xffff0000)
        if self.o['diag']:
            a.s_mov_b32(S(sST0), S(100) if self.o['diag'] == 1 else 1); self.nst = 1
            a.s_mov_b32(S(3), S(98)); a.s_mov_b32(S(98), 0); a.s_mov_b32(S(99), 0)
        a.s_lshl_b32(sB, S(2), 7); a.s_add_u32(sB, sB, FLAG0)
        a.v_mov_b32(t, sB); a.v_mov_b32(u, OOB)
        a.v_cmp_eq_u32('vcc', 0, V(0))
        a.v_cndmask_b32(V(29), u, t, 'vcc')
        a.v_add_u32(V(28), 4096, vL16)
        a.s_mul_i32(S(46), sW, 5120)

    def rp_setup2(self, D, R, base):
        a = self.a; t, u = V(60), V(61)
        for i in range(5):
            a.v_add_u32(t, 64 * i, vL)
            a.v_mul_u32_u24(u, 1639, t); a.v_lshrrev_b32(u, 16, u)
            a.v_mul_u32_u24(u, 640, u)
            a.v_add_u32(V(D + i), u, vL16)
        a.v_add_u32(V(D + 4), 4096, V(D + 4))
        a.v_lshrrev_b32(t, 4, vL); a.v_lshlrev_b32(t, 3, t); a.v_bfe_u32(u, vL, 2, 2); a.v_add_u32(t, t, u)
        a.v_mul_u32_u24(t, 640, t)
        a.s_mul_i32(sB, sW, 160); a.s_add_u32(sB, sB, base)
        a.v_add_u32(t, sB, t)
        a.v_and_b32(u, 3, vL)
        a.v_lshl_add_u32(V(R), u, 4, t)
        a.v_lshl_add_u32(V(R + 1), u, 3, t)

    def rp_unit2(self, su, nk, nunits, dst, ssrc, sdst):
        a = self.a
        a.s_and_b32(sB, su, 1); a.s_lshr_b32(sC, su, 1)
        a.s_mul_i32(ssrc, sC, 40960); a.s_mul_i32(sdst, sB, 640); a.s_add_u32(ssrc, ssrc, sdst)
        a.s_mul_i32(sdst, sW, 10240); a.s_add_u32(ssrc, ssrc, sdst)
        a.s_lshl_b32(sB, sB, 2); a.s_add_u32(sB, sB, sW); a.s_mul_i32(sB, sB, nk); a.s_add_u32(sB, sB, sC)
        a.s_mul_i32(sB, sB, 5120); a.s_add_u32(sdst, sB, dst)
        a.s_cmp_lt_u32(su, nunits); a.s_cselect_b32(ssrc, ssrc, OOB); a.s_cselect_b32(sdst, sdst, OOB)

    def rp_setup1(self, D, R, base, skq):
        a = self.a; t, u = V(60), V(61)
        a.v_lshrrev_b32(t, 3, vL); a.v_mul_u32_u24(t, 3456, t); a.v_and_b32(u, 7, vL)
        a.v_lshl_add_u32(V(D), u, 4, t)
        for i in range(1, 4): a.v_add_u32(V(D + i), i * (8 * 3456 - 1024), V(D))
        a.v_add_u32(V(D + 4), 32 * 3456, V(D))
        a.v_lshrrev_b32(t, 4, vL); a.v_lshlrev_b32(t, 3, t); a.v_bfe_u32(u, vL, 2, 2); a.v_add_u32(t, t, u)
        a.v_lshlrev_b32(t, 7, t); a.s_lshl_b32(sB, sW, 5); a.s_add_u32(sB, sB, base); a.v_add_u32(t, sB, t)
        a.v_and_b32(u, 3, vL); a.v_lshl_add_u32(V(R), u, 3, t)
        a.s_mul_i32(sB, skq, 256 - 5120); a.s_add_u32(sB, sB, 20480)
        a.v_add_u32(t, sB, vL16); a.v_mov_b32(u, OOB)
        a.v_cmp_gt_u32('vcc', 16, vL)
        a.v_cndmask_b32(V(27), u, t, 'vcc')

    def rp_unit1(self, su, skq, ssrc, sdst):
        a = self.a
        a.s_lshr_b32(sB, su, 1)
        a.s_lshl_b32(sC, skq, 2); a.s_add_u32(sC, sC, sW); a.s_mul_i32(sC, sC, 40 * 3456)
        a.s_lshl_b32(ssrc, sB, 7); a.s_add_u32(ssrc, ssrc, sC)
        a.s_lshl_b32(sB, sB, 2); a.s_add_u32(sB, sB, sW); a.s_mul_i32(sB, sB, 21 * 1024)
        a.s_mul_i32(sC, skq, 5120); a.s_add_u32(sB, sB, sC); a.s_add_u32(sdst, sB, W1P)
        a.s_cmp_lt_u32(su, 54); a.s_cselect_b32(ssrc, ssrc, OOB); a.s_cselect_b32(sdst, sdst, OOB)

    def rp_rd1(self, F, R):
        a = self.a
        for k in range(5):
            for jj in range(2): a.ds_read_b64_tr_b16(V(F + 4 * k + 2 * jj, 2), V(R), mods=f'offset:{k*4096 + jj*512}')

    def rp_cs(self, F, one, acc, c, sdst):
        a = self.a
        for i in range(5): a.v_mfma_f32_16x16x32_bf16(V(acc, 4), V(one, 4), V(F + 4 * i, 4), V(acc, 4) if i else 0)
        self.rp_st(F, sdst)
        a.v_cvt_pk_bf16_f32(V(c + 1), V(acc), V(c + 2))
        a.v_lshlrev_b32(V(acc + 1), 16, V(c + 1))
        a.v_sub_f32(V(acc + 1), V(acc), V(acc + 1))
        a.v_cvt_pk_bf16_f32(V(c), V(acc), V(acc + 1))
        return a.buffer_store_dwordx4(V(c, 4), V(27), sWS, sdst, mods='offen sc1')

    def rp_dma(self, D, srd, ssrc, base):
        a = self.a
        for i in range(5):
            if i in (0, 4): a.s_add_u32('m0', S(46), base + (4096 if i == 4 else 0))
            tok = a.buffer_load_dwordx4(V(D + i), srd, ssrc, mods=f'offen offset:{1024*(i%4)} lds')
        self.tok_rp = tok
        return tok

    def rp_rd2(self, F, R):
        a = self.a
        for k in range(5):
            for jj in range(2):
                off = jj * 2560 + (64 * (k // 2) + 8 * (k % 2) if k < 4 else 128)
                a.ds_read_b64_tr_b16(V(F + 4 * k + 2 * jj, 2), V(R) if k < 4 else V(R + 1), mods=f'offset:{off}')

    def rp_st(self, F, sdst):
        a = self.a
        for i in range(5):
            tok = a.buffer_store_dwordx4(V(F + 4 * i, 4), vL16 if i < 4 else V(28), sWS, sdst, mods=f'offen offset:{1024*(i%4)} sc1')
        return tok

    def helper(self, snap):
        a = self.a; t, u = V(60), V(61)
        a.label('L_helper')
        a.restore(snap)
        self.srd(sRP, 8, 819200); self.srd(sWq, 12, 2211840)
        a.s_mov_b32(S(8), -1); a.s_mov_b32(S(9), 0)
        D2, R2, D1, R1, RT = 22, 30, 32, 38, 40
        NU, LA = 7, self.o['hla']
        a.s_and_b32(sE, sRB, 1)
        us = lambda n: (S(sT0 + 2 * (n % 4)), S(sT0 + 2 * (n % 4) + 1))
        def unit(n):
            if n < 4:
                a.s_add_u32(sA, sRB, 16 * n)
                self.rp_unit1(sA, sE, *us(n))
            else:
                a.s_add_u32(sA, sRB, 16 * (n - 4) if n < 6 else 24)
                if n == 6:
                    a.s_cmp_ge_u32(sRB, 8); a.s_cselect_b32(sA, sA, 63)
                self.rp_unit2(sA, 20, 40, WOP, *us(n))
        tok = {}
        def dma(n):
            unit(n); tok[n] = self.rp_dma(D1 if n < 4 else D2, sWq if n < 4 else sRP, us(n)[0], n * 20480)
        self.rp_setup1(D1, R1, 0, sE)
        for n in range(LA): dma(n)
        self.rp_setup2(D2, R2, 0)
        for r in range(4): a.v_mov_b32(V(44 + r), ONES)
        for b in range(2): a.v_mov_b32(V(54 + 16 * b), 0); a.v_mov_b32(V(55 + 16 * b), 0)
        self.prefetch_setup(); self.p2_setup(); self.hflag_addr()
        self.make_tag()
        self.flag0()
        a.v_lshlrev_b32(V(56), 7, V(0)); a.v_add_u32(V(56), FLAG0, V(56))
        a.v_mov_b32(V(220), 0); a.v_mov_b32(V(221), 0)
        a.s_mov_b32(sRPS, OOB)
        for n in range(NU):
            F = 80 + 20 * (n % 2); base = n * 20480
            a.wait_tok(tok[n])
            if n == 4: a.wait_tok(last)
            a.s_barrier()
            if n == 4: a.buffer_store_dwordx2(V(vTAG, 2), self.vFLG, sWS, 0, mods='offen offset:8 sc1')
            if n >= 4:
                a.v_add_u32(V(RT), base, V(R2)); a.v_add_u32(V(RT + 1), base, V(R2 + 1))
                self.rp_rd2(F, RT)
            else:
                a.v_add_u32(V(RT), base, V(R1))
                self.rp_rd1(F, RT)
            if n + LA < NU and n != 3: dma(n + LA)
            a.waitcnt(lg=0)
            if n >= 4: self.rp_st(F, us(n)[1])
            else: last = self.rp_cs(F, 44, 48, 52 + 16 * (n % 2), us(n)[1])
            if n == 3: dma(n + LA)
            if n == 0: self.p2_ones()
            if n == 4: a.buffer_load_dwordx2(V(64, 2), V(56), sWS, 0, mods='offen sc1')
            if n == 5: self.p2_early_loads()
            if self.o['p1st'] == 2: self.stamp(4 + n)
        a.s_lshl_b32(sA, sRB, 8); a.v_add_u32(t, sA, V(0)); a.v_mov_b32(u, EPOCH)
        a.v_cmp_eq_u32('vcc', 1, t)
        a.v_cndmask_b32(self.vFLG, self.vFLG, u, 'vcc')
        self.check(V(56), V(64, 2), 0)
        a.need(V(58, 2))
        a.s_branch('L_p1j')

    def hflag_addr(self):
        a = self.a
        a.v_and_b32(V(57), 3, vL); a.v_lshlrev_b32(V(57), 6, V(57))
        a.v_bfe_u32(V(59), vL, 2, 2); a.v_lshl_add_u32(V(57), V(59), 1, V(57))
        a.v_add_u32(V(57), 57, V(57)); a.v_lshlrev_b32(V(57), 7, V(57)); a.v_add_u32(V(57), FLAGG, V(57))

    def make_tag(self):
        a = self.a
        a.v_readfirstlane_b32(S(10), V(vTAG)); a.v_readfirstlane_b32(S(11), V(vTAG + 1))
        a.s_getreg_b32(sA, 'hwreg(HW_REG_XCC_ID, 0, 4)')
        a.s_add_u32(S(10), S(10), 0x7F4A7C15); a.s_addc_u32(S(11), S(11), 0x9E3779B9)
        a.v_mov_b32(V(vTAG - 4), S(10)); a.v_mov_b32(V(vTAG - 3), S(11)); a.v_mov_b32(V(vTAG - 2), sA); a.v_mov_b32(V(vTAG - 1), 0)
        a.v_mov_b32(V(vTAG), S(10)); a.v_mov_b32(V(vTAG + 1), S(11))

    def chunk_offsets(self, c):
        a = self.a
        r = sT0 + 2 * (c % 4)
        a.s_xor_b32(S(r), sF, S(47))
        a.s_mul_i32(S(r + 1), S(r), 245760)
        a.s_lshl_b32(S(r), S(r), 7)
        if c < 9:
            a.s_add_u32(sF, sF, 1); a.s_cmp_eq_u32(sF, 10); a.s_cselect_b32(sF, 0, sF)

    def dma_chunk(self, c):
        a = self.a; slot = (c % 4) * 32768; out = []
        def mk(part, i):
            def f():
                if i == 0: a.s_add_u32('m0', sW4K, slot + part * 16384)
                return a.buffer_load_dwordx4(V((14, 18)[part] + i), (sX, sWq)[part], S(sT0 + 2 * (c % 4) + part), mods=f'offen offset:{1024*i} lds')
            return f
        return [mk(p, i) for p in range(2) for i in range(4)]

    def flag0(self):
        self.a.buffer_store_dwordx4(V(vTAG - 4, 4), V(29), sWS, 0, mods='offen sc1')

    def p1(self):
        a = self.a; o = self.o
        XA, WA = 192, 208
        SEL, RS, CS, SQ, TM = 40, 44, 48, 52, 54
        XF, WF, ACC = 64, 80, 96
        PL = [160 + 4 * i for i in range(5)]
        PR = (160, 222); LS = 34
        a.s_cmp_eq_u32(sCT, 15)
        a.s_cbranch_scc1('L_helper')
        snap_h = a.snapshot()
        toks = self.toks
        for c in range(2, 4): self.chunk_offsets(c)
        t, u, p, h = V(60), V(61), V(62), V(33)
        self.pi(p, vL, t)
        a.v_lshrrev_b32(h, 5, vL)
        a.v_bfe_u32(t, p, 1, 3); a.v_xor_b32(t, t, h)
        a.v_lshlrev_b32(t, 4, t); a.v_lshl_add_u32(t, p, 7, t)
        a.v_add_u32(t, sW4K, t)
        for ss in range(4):
            a.v_xor_b32(V(XA + ss), 32 * ss, t)
            a.v_xor_b32(V(XA + 4 + ss), 4096, V(XA + ss))
        for k in range(8): a.v_add_u32(V(XA + 8 + k), 65536, V(XA + k))
        a.v_bfe_u32(t, vL, 2, 2)
        a.s_and_b32(sA, sW, 1); a.s_lshl_b32(sA, sA, 1); a.s_lshr_b32(sB, sW, 1); a.s_add_u32(sE, sA, sB)
        a.v_xor_b32(u, sE, t); a.v_lshlrev_b32(u, 6, u)
        a.v_lshl_add_u32(t, h, 3, t); a.v_lshl_add_u32(u, t, 8, u)
        a.v_bfe_u32(t, vL, 4, 1); a.v_lshl_add_u32(u, t, 5, u)
        a.v_and_b32(t, 1, vL); a.v_lshl_add_u32(u, t, 4, u)
        a.v_bfe_u32(t, vL, 1, 1); a.v_lshl_add_u32(V(WA), t, 3, u)
        a.v_xor_b32(V(WA + 1), 64, V(WA))
        a.v_add_u32(V(WA + 2), 65536, V(WA)); a.v_add_u32(V(WA + 3), 65536, V(WA + 1))
        a.v_lshrrev_b32(t, 2, vL); a.v_xor_b32(t, t, vL); a.v_and_b32(t, 4, t)
        a.v_mov_b32(u, ONES)
        a.v_cmp_eq_u32('vcc', 0, t)
        a.v_cndmask_b32(V(SEL), 0, u, 'vcc')
        for r in range(1, 4): a.v_mov_b32(V(SEL + r), V(SEL))
        a.v_mov_b32(V(SQ), 0); a.v_mov_b32(V(SQ + 1), 0)
        a.v_lshlrev_b32(V(32), 2, p)
        a.s_mul_i32(sA, sRB, 10240); a.s_lshl_b32(sB, sW, 9); a.s_add_u32(sA, sA, sB); a.s_add_u32(sA, sA, RPART)
        a.s_mul_i32(sB, sCT, 10240); a.s_lshl_b32(sC, sE, 9); a.s_add_u32(sB, sB, sC); a.s_add_u32(sB, sB, CPART - 512)
        a.s_mov_b32(S(8), -1); a.s_mov_b32(S(9), 0)
        a.v_add_u32(t, sA, vL16); a.v_add_u32(u, sB, vL16)
        a.v_cndmask_b32(V(56), u, t, S(8, 2))
        a.v_and_b32(t, 31, vL); a.v_lshlrev_b32(t, 3, t)
        a.s_lshl_b32(sA, sW, 8); a.s_add_u32(sA, sA, EXB + 512); a.v_add_u32(V(34), sA, t)
        a.s_lshl_b32(sB, sE, 8); a.s_add_u32(sB, sB, EXB + 1536); a.v_add_u32(V(36), sB, t)
        a.v_cndmask_b32(V(30), V(36), V(34), S(8, 2))
        a.v_xor_b32(V(35), 256, V(34)); a.v_xor_b32(V(37), 256, V(36))
        a.s_lshl_b32(sA, sW, 7); a.s_add_u32(sA, sA, EXB); a.v_add_u32(V(31), sA, V(32))

        def reads(c, ss, buf):
            slot = c % 4; win = slot // 2; base = (slot % 2) * 32768
            r = []
            for f in range(2):
                r.append(lambda f=f: a.ds_read_b128(V(XF + 8 * buf + 4 * f, 4), V(XA + 8 * win + 4 * f + ss), mods=f'offset:{base}'))
                for jj in range(2):
                    r.append(lambda f=f, jj=jj: a.ds_read_b64_tr_b16(V(WF + 8 * buf + 4 * f + 2 * jj, 2), V(WA + 2 * win + f),
                                                                      mods=f'offset:{base + 16384 + ss*4096 + jj*1024}'))
            return r

        def part_store():
            a.v_add_f32(V(SQ), V(SQ), V(SQ + 1))
            a.v_mov_b32(V(SQ + 1), V(SQ))
            self.make_tag()
            a.v_permlane32_swap_b32(V(SQ), V(SQ + 1))
            a.v_add_f32(V(vTAG - 9), V(SQ), V(SQ + 1))
            a.v_cndmask_b32(V(vTAG - 10), V(CS), V(RS), S(8, 2))
            a.v_mov_b32(V(vTAG - 8), S(10)); a.v_mov_b32(V(vTAG - 7), S(11))
            a.buffer_store_dwordx4(V(vTAG - 10, 4), V(56), sWS, sSPIN, mods='offen sc1')
        def part_load(count=True):
            for i in range(5):
                if i % 2 == 0: a.s_mov_b32(sD, 2048 * i)
                a.buffer_load_dwordx4(V(PL[i], 4), V(56), sWS, sD, mods=f'offen offset:{2048*(i%2)} sc1', count=count)
        def part_cmp():
            a.v_cmp_eq_u64(S(4, 2), sTAG, V(PL[4] + 2, 2))
            for i in range(4): a.v_cmp_eq_u64(S(12 + 2 * i, 2), sTAG, V(PL[i] + 2, 2))
            for i in range(4): a.s_and_b64(S(4, 2), S(4, 2), S(12 + 2 * i, 2))
        def part_check():
            Lr, Lb = self.lab('retry'), self.lab('back')
            a.s_cmp_eq_u64(S(4, 2), -1)
            a.s_cbranch_scc0(Lr)
            a.label(Lb)
            def ool():
                L2 = self.lab('retry2')
                a.label(Lr)
                a.s_mov_b32(sSPIN, 0x20000)
                a.label(L2)
                part_load(False)
                a.I('s_waitcnt', mods='vmcnt(0)')
                part_cmp()
                a.s_cmp_eq_u64(S(4, 2), -1)
                a.s_cbranch_scc1(Lb)
                a.s_sub_u32(sSPIN, sSPIN, 1); a.s_cmp_lg_u32(sSPIN, 0)
                a.s_cbranch_scc1(L2)
                a.s_branch(Lb)
            self.ool.append(ool)
        def part_sum():
            for i in range(1, 5):
                a.v_add_f32(V(PL[0]), V(PL[0]), V(PL[i])); a.v_add_f32(V(PL[0] + 1), V(PL[0] + 1), V(PL[i] + 1))
            a.s_mov_b32(sA, f2u(1.0 / 640))
            a.s_cmp_lt_u32(sCT, 5); a.s_cselect_b32(sB, f2u(QSCALE), f2u(1.0))
            a.v_mul_f32(V(TM), f2u(-1.0 / 640), V(PL[0]))
            a.v_mul_f32(V(TM + 1), V(TM), V(TM))
            a.v_fma_f32(V(SQ), V(PL[0] + 1), sA, '-' + V(TM + 1))
            a.v_max_f32(V(SQ), 0, V(SQ))
            a.v_add_f32(V(SQ), f2u(1e-5), V(SQ))
            a.v_rsq_f32(V(SQ), V(SQ))
            a.v_cndmask_b32(V(TM), V(PL[0]), V(TM), S(8, 2))
            a.v_mul_f32(V(SQ), sB, V(SQ))
            a.v_cvt_pk_bf16_f32(V(PL[1]), V(TM), V(TM))
            a.v_mov_b32(V(SQ + 1), V(SQ))
            a.v_and_b32(V(TM + 1), sHI, V(PL[1]))
            a.v_sub_f32(V(TM + 1), V(TM), V(TM + 1))
            a.v_permlane32_swap_b32(V(SQ), V(SQ + 1))
            a.v_cvt_pk_bf16_f32(V(PL[2]), V(TM), V(TM + 1))
            a.v_cndmask_b32(V(TM), V(TM), V(TM + 1), S(8, 2))
            a.v_cndmask_b32(V(PL[1]), V(PL[2]), V(PL[1]), S(8, 2))
            a.v_cvt_pk_bf16_f32(V(PL[1] + 1), V(TM), 0)
            a.ds_write_b32(V(31), V(SQ))
            a.ds_write_b64(V(30), V(PL[1], 2))
        def tail_setup(var):
            if var == 'qk':
                self.srd(sRP, 14, 2211840)
                self.rp_setup2(22, 220, RPB)
                a.s_lshl_b32(sA, sCT, 4); a.s_add_u32(sA, sA, sRB)
                self.rp_unit2(sA, 54, 108, W2P, sTSRC, sRPS)
                a.v_mov_b32(V(27), OOB)
            else:
                self.srd(sRP, 12, 2211840)
                a.s_and_b32(S(7), sRB, 1); a.s_add_u32(S(7), S(7), 2)
                self.rp_setup1(22, 220, RPB, S(7))
                a.s_sub_u32(sA, sCT, 10); a.s_lshl_b32(sA, sA, 4); a.s_add_u32(sA, sA, sRB)
                self.rp_unit1(sA, S(7), sTSRC, sRPS)
        def epi_setup(var):
            if var == 'qk':
                a.v_mov_b32(V(60), V(31))
                a.v_lshlrev_b32(V(38), 2, V(32)); a.v_lshl_add_u32(V(38), V(33), 9, V(38))
            else:
                a.v_lshlrev_b32(V(60), 5, V(33))
                a.s_lshl_b32(sB, sW, 7); a.s_add_u32(sB, sB, EXB); a.v_add_u32(V(60), sB, V(60))
                for b in range(2):
                    a.s_xor_b32(sB, sE, b); a.s_lshl_b32(sB, sB, 5)
                    a.s_sub_u32(sC, sCT, 10); a.s_lshl_b32(sC, sC, 7); a.s_add_u32(sB, sB, sC)
                    a.v_lshrrev_b32(V(63), 2, V(32)); a.v_add_u32(V(63), sB, V(63))
                    a.v_mul_u32_u24(V(38 + b), 3277, V(63)); a.v_lshrrev_b32(V(38 + b), 16, V(38 + b))
                    a.v_mul_u32_u24(V(38 + b), 960, V(38 + b))
                    a.v_lshl_add_u32(V(38 + b), V(63), 4, V(38 + b))
                    a.v_mul_u32_u24(V(63), 320, V(33)); a.v_add_u32(V(38 + b), V(38 + b), V(63))
            a.v_xor_b32(V(61), 128, V(60))
            for f in range(2):
                a.s_xor_b32(sB, sW, f); a.s_lshl_b32(sC, sRB, 2); a.s_add_u32(sB, sB, sC); a.s_mul_i32(sB, sB, REC)
                if var == 'qk':
                    for b in range(2):
                        a.s_xor_b32(sC, sE, b); a.s_lshl_b32(sC, sC, 11); a.s_lshl_b32(sA, sCT, 13)
                        a.s_add_u32(sC, sC, sA); a.s_add_u32(sPO[2 * b + f], sB, sC)
                else:
                    a.s_add_u32(sPO[f], sB, OV)
        XE, WE, SC = 40, 44, 180
        parts = [self.prefetch_setup, self.p2_setup, self.p2_ones]
        for f in parts[:o['pre']]: f()
        late = lambda: [f() for f in parts[o['pre']:]]
        if not o['c1early']:
            for f in self.dma_chunk(1): toks[1] = f()
        a.wait_tok(toks[0])
        a.s_barrier()
        self.stamp(1)
        for f in reads(0, 0, 0): f()
        a.s_cmp_ge_u32(sCT, 10)
        a.s_cbranch_scc1('L_p1v')
        snap = a.snapshot()
        for var in ('qk', 'v'):
            if var == 'v':
                a.label('L_p1v'); a.restore(snap)
            a.mark('p1' + var)
            tk = dict(toks)
            LA = o['la']
            pend = [(cc, f) for cc in range(2, LA) for f in self.dma_chunk(cc)]
            fill = []; offs = []; extra = []
            S_PL, S_CK = o['s_pl'], o['s_ck']
            take = self.take
            def dma(n):
                for _ in range(n):
                    if pend:
                        cc, f = pend.pop(0); tk[cc] = f()
            LX = lambda f, ss: A(132 + 32 * f + 4 * ss, 4)
            LW = lambda f, ss: A(132 + 32 * f + 16 + 4 * ss, 4)
            def lrx(f): [a.ds_read_b128(LX(f, ss), V(XA + 4 * f + ss), mods='offset:32768') for ss in range(4)]
            def lrw(f, sss=range(4)):
                for ss in sss:
                    for jj in range(2):
                        a.ds_read_b64_tr_b16(A(132 + 32 * f + 16 + 4 * ss + 2 * jj, 2), V(WA + f), mods=f'offset:{32768 + 16384 + ss*4096 + jj*1024}')
            def lr00():
                for ss in range(4):
                    a.ds_read_b128(LX(0, ss), V(XA + ss), mods='offset:32768'); lrw(0, [ss])
            def lext():
                for f in range(2):
                    a.ds_read_b64(V(XE + 2 * f, 2), V(34 + f)); a.ds_read_b64(V(WE + 2 * f, 2), V(36 + f))
            def lzero():
                for r in range(4): a.v_cndmask_b32(V(XE + r), 0, V(XE + r), S(8, 2))
            def lsc(f):
                if var == 'qk': a.ds_read_b32(V(SC + f), V(60 + f))
                else:
                    for k in range(4): a.ds_read_b128(V((160, 222)[f] + 4 * k, 4), V(60 + f), mods=f'offset:{(k//2)*64 + (k%2)*16}')
            for step in range(36):
                c, ss = divmod(step, 4); buf = step % 2
                if step == 35:
                    while fill: fill.pop(0)()
                a.waitcnt(lg=0)
                if ss == 3:
                    a.wait_tok(tk[c + 1])
                    a.s_barrier()
                    if o['p1st'] == 1: self.stamp(4 + c)
                    if c + LA < 10: pend += [(c + LA, f) for f in self.dma_chunk(c + LA)]
                nxt = reads((step + 1) // 4, (step + 1) % 4, buf ^ 1) if step < 35 else []
                X = lambda f: V(XF + 8 * buf + 4 * f, 4)
                W = lambda f: V(WF + 8 * buf + 4 * f, 4)
                if step < 8:
                    for d in range(4):
                        x = V(XF + 8 * buf + d)
                        fill.append(lambda x=x: a.v_lshlrev_b32(V(TM), 16, x))
                        fill.append(lambda x=x: a.v_and_b32(V(TM + 1), sHI, x))
                        fill.append(lambda: a.v_fmac_f32(V(SQ), V(TM), V(TM)))
                        fill.append(lambda: a.v_fmac_f32(V(SQ + 1), V(TM + 1), V(TM + 1)))
                if step == 8: fill += a.capture(part_store) + a.capture(self.flag0)
                if step == 9:
                    fill += a.capture(lambda: (tail_setup(var), epi_setup(var), self.hflag_addr(), late()))
                if ss == 2 and 4 <= c + LA < 10: offs = a.capture(lambda: self.chunk_offsets(c + LA))
                if step == S_PL: extra = a.capture(part_load)
                if step == o['s_wf']:
                    while fill and step <= S_CK: fill.pop(0)()
                    pend += [(97, f) for f in a.capture(self.p2_early_loads)]
                if step == o['s_td']: pend += [(98, f) for f in a.capture(lambda: self.rp_dma(22, sRP, sTSRC, RPB))]
                if step == S_CK: assert not extra
                if step == S_CK: fill += a.capture(part_cmp) + [part_check] + a.capture(part_sum)
                if step == 35: fill += a.capture(lambda: (lr00(), lext(), lrx(1) if var == 'qk' else lrw(1)))
                def mm(b, f):
                    d = V(ACC + 32 * b + 16 * f, 16)
                    ops = (W(b), X(f)) if var == 'qk' else (X(f), W(b))
                    a.v_mfma_f32_32x32x16_bf16(d, ops[0], ops[1], d if step else 0)
                nd = 2 if (step < 3 and len(pend) > 6 - 2 * step) else 1
                if step < 8:
                    mm(0, 0); take(nxt, 3); take(fill, 2)
                    mm(0, 1); take(nxt, 3); take(fill, 2)
                    mm(1, 0); dma(nd); take(fill, 4); take(offs, 9)
                    mm(1, 1); dma(nd); take(fill, 4)
                    a.v_mfma_f32_16x16x32_bf16(V(RS, 4), V(SEL, 4), X(0), V(RS, 4) if step else 0); take(fill, 2)
                    a.v_mfma_f32_16x16x32_bf16(V(CS, 4), V(SEL, 4), W(0), V(CS, 4) if step else 0); take(fill, 2)
                else:
                    B = o['b1'] if step < 27 else 24
                    mm(0, 0); take(nxt, 3); take(offs, 3); a.fill(fill, B)
                    mm(0, 1); take(nxt, 3); take(offs, 3); take(extra, o['pl2']); a.fill(fill, B)
                    mm(1, 0); dma(nd); a.fill(fill, B)
                    mm(1, 1); dma(nd); a.fill(fill, B - 4)
            while pend: pend.pop(0)[1]()
            order = [(0, 0), (0, 1), (1, 0), (1, 1)] if var == 'qk' else [(0, 0), (1, 0), (0, 1), (1, 1)]
            fill += a.capture(lambda: (lzero(), lsc(0), lrw(1) if var == 'qk' else lrx(1), lsc(1)))
            def epi(b, f, n, pk):
                acc = ACC + 32 * b + 16 * f
                for s2 in range(2):
                    op_ = 64 + 8 * n + 4 * s2
                    for r in range(8 * s2, 8 * s2 + 8, 2 if pk else 1):
                        if var == 'qk':
                            if pk: a.v_pk_mul_f32(V(acc + r, 2), V(acc + r, 2), V(SC, 2), mods=f'op_sel:[0,{f}] op_sel_hi:[1,{f}]')
                            else: a.v_mul_f32(V(acc + r), V(acc + r), V(SC + f))
                        else:
                            if pk: a.v_pk_mul_f32(V(acc + r, 2), V(acc + r, 2), V((160, 222)[f] + r, 2))
                            else: a.v_mul_f32(V(acc + r), V(acc + r), V((160, 222)[f] + r))
                    for k in range(4): a.v_cvt_pk_bf16_f32(V(op_ + k), V(acc + 8 * s2 + 2 * k), V(acc + 8 * s2 + 2 * k + 1))
                    if var == 'qk':
                        self.tok_p1 = a.buffer_store_dwordx4(V(op_, 4), V(38), sWS, sPO[2 * b + f], mods=f'offen offset:{1024*s2} sc1')
                    else:
                        self.tok_p1 = a.buffer_store_dwordx4(V(op_, 4), V(38 + b), sWS, sPO[f], mods=f'offen offset:{640*s2} sc1')
            for n, (b, f) in enumerate(order):
                d = V(ACC + 32 * b + 16 * f, 16)
                for ss in range(5):
                    if ss < 4:
                        ops = (LW(b, ss), LX(f, ss)) if var == 'qk' else (LX(f, ss), LW(b, ss))
                        a.v_mfma_f32_32x32x16_bf16(d, ops[0], ops[1], d)
                    else:
                        ops = (V(WE + 2 * b, 2), V(XE + 2 * f, 2)) if var == 'qk' else (V(XE + 2 * f, 2), V(WE + 2 * b, 2))
                        a.v_mfma_f32_32x32x8_bf16(d, ops[0], ops[1], d)
                    if n > 0 and ss == 1: fill += a.capture(lambda: epi(*order[n - 1], n - 1, False))
                    a.fill(fill, 24 if n == 0 else 28)
            self.stamp(2)
            while fill: fill.pop(0)()
            epi(*order[3], 3, True)
            a.mark('x')
            if var == 'qk': a.s_branch('L_p1j')
        snap_j = a.snapshot()
        self.ool.append(lambda: self.helper(snap_h))
        a.label('L_p1j')
        self._last = None
        self.stamp(3)

    def prefetch_setup(self):
        a = self.a
        sWo, sW2, sW2L = S(62), S(64), S(65)
        a.s_and_b32(sHG, sS, 7)
        a.s_mul_i32(sA, sHG, 102400); a.s_mul_i32(sB, sW, 25600); a.s_add_u32(sA, sA, sB); a.s_add_u32(sWo, sA, WOP)
        a.s_and_b32(sA, sS, 15); a.s_mul_i32(sA, sA, 7); a.s_min_u32(S(66), sA, 101)
        a.s_bitcmp1_b32(S(66), 0)
        a.s_cselect_b32(sA, 3, 0); a.s_cselect_b32(sB, 0, 4)
        a.s_add_u32(S(63), S(66), sA); a.s_add_u32(S(69), S(66), sB)
        a.s_mul_i32(sA, sW, 3072); a.s_min_u32(S(45), sA, 8192)
        a.s_mul_i32(sA, S(69), 21504); a.s_add_u32(sA, sA, S(45)); a.s_add_u32(S(44), sA, W1P + 10240)
        a.s_mul_i32(S(67), sW, 14)
        a.s_mul_i32(sA, sHG, 54); a.s_add_u32(sA, sA, S(67)); a.s_mul_i32(sA, sA, 5120); a.s_add_u32(sW2, sA, W2P)
        a.s_cmp_eq_u32(sW, 3); a.s_cselect_b32(sW2L, OOB, sW2)

    def prefetch_lists(self):
        a = self.a
        sWo, sW2, sW2L = S(62), S(64), S(65)
        def reg_load(dst, sbase, m):
            def f():
                if self._last != (sbase, m // 4): a.s_add_u32(sD, sbase, (m // 4) * 4096)
                self._last = (sbase, m // 4)
                return a.buffer_load_dwordx4(dst, vL16, sWS, sD, mods=f'offen offset:{(m%4)*1024} sc1')
            f.cost = 8 if m % 4 == 0 else 4
            return f
        self._last = None
        wo = [reg_load(A(132 + 4 * n, 4), sWo, n) for n in range(25)]
        regs = [A(4 * n, 4) for n in range(64)] + [V(232 + 4 * n, 4) for n in range(6)]
        self.w2reg = {}; w2 = []
        for n in range(70):
            k, t = (KE + KL)[n // 5], n % 5
            self.w2reg[(k, t)] = regs[n]
            w2.append(reg_load(regs[n], sW2 if k < 12 else sW2L, 5 * k + t))
        def w1_run(T, k0, cnt):
            out = []
            for i in range(cnt):
                def f(i=i):
                    if i == 0:
                        if T is None:
                            a.s_mul_i32(S(19), sW, 1024 * (w1_slot(1, k0) - w1_slot(0, k0))); a.s_add_u32('m0', S(19), 1024 * w1_slot(0, k0))
                            a.s_add_u32(S(68), S(63), sW); a.s_mul_i32(S(68), S(68), 21504); a.s_add_u32(S(68), S(68), W1P + 1024 * k0)
                        elif T == 4:
                            a.s_mul_i32(S(19), sW, 3072); a.s_min_u32(S(19), S(19), 7168); a.s_add_u32('m0', S(19), 1024 * w1_slot(4, 0))
                            a.s_mul_i32(S(68), S(69), 21504); a.s_add_u32(S(68), S(68), S(19)); a.s_add_u32(S(68), S(68), W1P)
                        else:
                            a.s_add_u32('m0', 'm0', 10240); a.s_add_u32(S(68), S(68), 21504)
                    elif i % 4 == 0:
                        a.s_add_u32('m0', 'm0', 4096); a.s_add_u32(S(68), S(68), 4096)
                    return a.buffer_load_dwordx4(vL16, sWS, S(68), mods=f'offen offset:{1024*(i%4)} sc1 lds')
                out.append(f)
            return out
        self.pf_wo, self.pf_w2 = wo, w2
        self.pf_w1a = w1_run(None, 0, 10) + w1_run(4, 0, 3) + w1_run(5, 0, 3) + w1_run(6, 0, 3)
        self.pf_w1m = w1_run(None, 10, 7)
        self.w1breg = [V(224 + 4 * n, 4) for n in range(7)] + [A(232 + 4 * n, 4) for n in range(6)]
        def stg(n):
            def f():
                if n == 0: a.s_add_u32(S(68), S(68), 3072)
                elif (n - 4) % 3 == 0 and n >= 4: a.s_add_u32(S(68), S(44), 21504 * ((n - 4) // 3))
                return a.buffer_load_dwordx4(self.w1breg[n], vL16, sWS, S(68), mods=f'offen offset:{1024*(n if n < 4 else (n-4) % 3)} sc1')
            return f
        self.pf_w1b = [stg(n) for n in range(13)]
        if self.o['nopf']:
            self.pf_wo, self.pf_w2, self.pf_w1a, self.pf_w1m, self.pf_w1b = [], [], [], [], []

    @staticmethod
    def take(lst, n):
        tok = None
        for _ in range(n):
            if lst: tok = lst.pop(0)()
        return tok

    VV = 50
    vXR, vQ1, vQ2, vK1, vK2, vVV, vO2, vFL, vTF, vTC = [V(182 + i) for i in range(10)]
    vTO, vGR, vBP, vFLL, vFLG = [V(212 + i) for i in range(5)]

    def p2_setup(self):
        a = self.a; o = self.o
        t, u, p, h = V(238), V(239), V(240), V(241)
        sG, sH = S(7), S(71)
        a.v_add_u32(self.vFLG, FLAGG - FLAG0, V(29))
        a.s_lshr_b32(sA, sS, 3); a.s_lshl_b32(sA, sA, 1); a.s_lshl_b32(sB, sJ, 3); a.s_add_u32(sA, sA, sB)
        a.s_mul_i32(sTT0, sA, REC)
        a.s_lshl_b32(sB, sA, 5); a.s_lshl_b32(sC, sW, 4); a.s_add_u32(sB, sB, sC); a.s_mul_i32(sB, sB, 1280)
        a.s_mul_i32(sC, sHG, 160); a.s_add_u32(S(70), sB, sC)
        a.v_and_b32(t, 15, vL); a.v_lshrrev_b32(u, 4, vL); a.v_lshlrev_b32(u, 2, u); a.v_lshl_add_u32(self.vBP, t, 4, u)
        a.v_lshrrev_b32(t, 2, vL); a.v_mul_u32_u24(t, 1280, t); a.v_and_b32(u, 3, vL)
        a.v_lshl_add_u32(self.vXR, u, 4, t); a.v_lshl_add_u32(V(3), u, 3, t)
        a.v_and_b32(t, 31, vL); a.v_lshlrev_b32(t, 3, t); a.v_add_u32(t, sJ, t); a.v_lshlrev_b32(t, 7, t); a.v_add_u32(self.vGR, FLAG0, t)
        a.s_and_b32(sB, sW, 1); a.s_mul_i32(sB, sB, REC); a.s_lshr_b32(sC, sW, 1); a.s_mul_i32(sC, sC, 2560); a.s_add_u32(sB, sB, sC)
        a.s_mul_i32(sC, sHG, 5120); a.s_add_u32(sB, sB, sC); a.s_add_u32(sB, sB, sTT0); a.s_add_u32(sB, sB, OH)
        a.v_lshlrev_b32(h, 7, vL); a.v_add_u32(t, sB, h)
        a.s_lshl_b32(sB, sA, 1); a.s_add_u32(sB, sB, sW); a.s_lshl_b32(sB, sB, 10); a.s_lshl_b32(sC, sHG, 7)
        a.v_cmp_gt_u32('vcc', 20, vL)
        a.s_add_u32(sB, sB, sC); a.s_add_u32(sB, sB, STATS); a.v_mov_b32(u, sB)
        a.v_cndmask_b32(t, u, t, 'vcc')
        a.s_lshl_b32(sB, S(2), 7); a.s_add_u32(sB, sB, FLAGL); a.v_mov_b32(u, sB)
        a.v_cndmask_b32(self.vTO, u, t, S(8, 2))
        a.v_cmp_eq_u32('vcc', 0, vL)
        a.s_lshl_b32(sC, sW, 3); a.s_add_u32(sB, sB, sC); a.v_mov_b32(t, sB); a.v_mov_b32(u, OOB)
        a.v_cndmask_b32(self.vFLL, u, t, 'vcc')
        a.s_lshl_b32(sB, sCT, 4); a.s_add_u32(sB, sB, sRB); a.s_lshl_b32(sB, sB, 7); a.s_add_u32(sB, sB, sC); a.s_add_u32(sB, sB, FLAG2)
        a.v_mov_b32(t, sB); a.v_cndmask_b32(self.vTF, u, t, 'vcc')
        a.v_min_u32(t, 13, vL); a.v_add_u32(t, S(67), t); a.v_min_u32(t, 53, t); a.v_lshlrev_b32(t, 8, t)
        a.s_lshr_b32(sA, sHG, 2); a.s_lshl_b32(sA, sA, 7); a.s_and_b32(sB, sHG, 3); a.s_lshl_b32(sB, sB, 3); a.s_add_u32(sA, sA, sB)
        a.s_add_u32(sA, sA, FLAG2); a.v_add_u32(self.vTC, sA, t)
        a.v_cmp_gt_u32('vcc', 16, vL)
        a.v_bfe_u32(t, vL, 1, 3); a.v_min_u32(t, 6, t); a.v_add_u32(t, S(66), t)
        a.v_and_b32(u, 3, t); a.v_lshlrev_b32(u, 3, u); a.v_lshrrev_b32(t, 2, t); a.v_lshl_add_u32(u, t, 8, u)
        a.v_and_b32(t, 1, vL); a.v_lshl_add_u32(u, t, 7, u); a.v_add_u32(u, FLAG2 + 160 * 128, u)
        a.v_cndmask_b32(self.vTC, u, self.vTC, 'vcc')
        a.s_lshl_b32(sA, sHG, 2); a.s_add_u32(sA, sA, sW)
        a.s_lshr_b32(sB, sA, 1); a.s_mul_i32(sB, sB, 2560)
        a.s_and_b32(sC, sW, 1)
        a.s_mul_i32(sG, sC, 1536); a.s_add_u32(sG, sG, sB)
        a.s_lshl_b32(sH, sC, 3); a.s_add_u32(sH, sH, sB); a.s_add_u32(sH, sH, 1024)
        self.pi(p, vL, t)
        a.v_lshrrev_b32(h, 5, vL)
        a.v_add_u32(self.vQ1, sG, vL16)
        a.v_and_b32(t, 31, vL); a.v_lshlrev_b32(t, 4, t); a.v_add_u32(self.vQ2, sH, t)
        a.v_mov_b32(u, OOB); a.v_cndmask_b32(self.vO2, u, self.vQ2, S(8, 2))
        a.v_lshlrev_b32(t, 4, p); a.v_lshl_add_u32(u, h, 9, t)
        a.s_add_u32(sG, sG, OK_); a.v_add_u32(self.vK1, sG, u)
        a.v_mul_u32_u24(u, REC, h); a.v_add_u32(u, u, t)
        a.s_add_u32(sH, sH, OK_); a.v_add_u32(self.vK2, sH, u)
        a.v_and_b32(u, 31, vL); a.v_cmp_gt_u32('vcc', 16, u)
        a.s_lshl_b32(sG, sC, 2); a.v_add_u32(t, sG, p)
        a.s_lshl_b32(sG, sC, 4); a.v_subrev_u32(u, sG, u)
        a.v_cndmask_b32(t, u, t, 'vcc')
        a.v_mul_u32_u24(u, 320, h); a.v_lshl_add_u32(t, t, 4, u)
        a.s_mul_i32(sA, sA, 1280); a.s_add_u32(sA, sA, OV); a.v_add_u32(self.vVV, sA, t)
        a.v_and_b32(t, 1, vL); a.v_mul_u32_u24(t, 79, t); a.s_mul_i32(sA, sHG, 80); a.v_add_u32(t, sA, t); a.v_lshrrev_b32(t, 7, t)
        a.v_bfe_u32(u, vL, 3, 2); a.v_min_u32(u, 2, u); a.v_mad_u32_u24(t, u, 5, t)
        a.v_bfe_u32(u, vL, 1, 2); a.v_min_u32(u, 2, u)
        a.s_lshl_b32(sA, sJ, 1); a.s_lshr_b32(sB, sS, 4); a.s_add_u32(sA, sA, sB); a.s_sub_u32(sA, sA, 2)
        a.v_add_u32(u, sA, u); a.v_max_i32(u, 0, u)
        a.v_and_b32(h, 3, u); a.v_lshlrev_b32(h, 6, h); a.v_lshrrev_b32(u, 2, u); a.v_lshl_add_u32(h, u, 1, h)
        a.v_and_b32(u, 7, t); a.v_lshl_add_u32(h, u, 3, h); a.v_lshrrev_b32(t, 3, t); a.v_add_u32(t, t, h)
        a.v_lshlrev_b32(t, 7, t); a.v_add_u32(self.vFL, FLAGG, t)

    def p2_ones(self):
        a = self.a
        for pr in range(5):
            a.s_cmp_ge_u32(sTT0, (8 - 2 * pr) * REC); a.s_cselect_b32(sC, ONES, 0)
            for r in range(16): a.v_accvgpr_write_b32(A(self.VV + 16 * pr + r), sC)

    def p2_table(self):
        a = self.a
        for tt in range(10):
            if tt < 8:
                a.s_sub_u32(S(sT0 + tt), sTT0, (8 - tt) * REC); a.s_cselect_b32(S(sT0 + tt), OOB, S(sT0 + tt))
            else: a.s_add_u32(S(sT0 + tt), sTT0, (tt - 8) * REC)

    def p2_early_loads(self):
        a = self.a
        a.buffer_load_dwordx4(V(vHR, 4), self.vXR, sX, S(70), mods='offen')
        a.buffer_load_dwordx4(V(vHR + 4, 4), self.vXR, sX, S(70), mods='offen offset:64')
        a.buffer_load_dwordx2(V(vHR + 8, 2), V(3), sX, S(70), mods='offen offset:128')
        a.buffer_load_dwordx4(V(244, 4), self.vGR, sWS, 0, mods='offen sc1')
        a.buffer_load_dwordx2(V(58, 2), V(57), sWS, 0, mods='offen offset:8 sc1')

    def p2(self):
        a = self.a; o = self.o
        K1, K2, VV = 0, 40, self.VV
        Q1, Q2 = 16, 24
        MD, MF = 32, 48
        SB, PB, OA = 64, 96, 112
        t, u, p = V(238), V(239), V(156)
        a.mark('h1')
        self.prefetch_lists()
        self.check(V(57), V(58, 2), 8)
        a.s_barrier()
        pf = self.pf_w1a
        self.take(pf, o['pf1'])
        self.p2_table()
        a.v_cndmask_b32(self.vTC, V(57), self.vTC, S(8, 2))
        for d in range(10): a.ds_bpermute_b32(V(vHR + d), self.vBP, V(vHR + d))
        for r in range(4): a.v_mov_b32(V(144 + r), ONES)
        a.v_mov_b32(V(154), 0); a.v_mov_b32(V(155), 0)
        self.vflag = V(14); a.v_mov_b32(V(14), self.vFLL)
        a.s_getreg_b32(sA, 'hwreg(HW_REG_XCC_ID, 0, 4)')
        a.v_cmp_eq_u64(S(4, 2), sTAG, V(244, 2))
        a.v_cmp_eq_u32('vcc', sA, V(246))
        a.s_and_b64('vcc', 'vcc', S(4, 2))
        a.s_cmp_eq_u64('vcc', -1)
        a.s_cselect_b32(sPURE, 1 if o['local'] else 0, 0)
        a.v_and_b32(t, 31, vL); a.v_lshrrev_b32(u, 5, vL); a.v_lshlrev_b32(u, 3, u); a.v_sub_u32(t, t, u)
        a.v_mov_b32(u, NINF); a.v_mov_b32(p, 0)
        for r in range(17):
            if r < 16: a.v_cmp_le_i32(S(12 + 2 * (r % 2), 2), 16 * (r // 8) + r % 8, t)
            if r > 0:
                a.v_cndmask_b32(V(MD + r - 1), u, p, S(12 + 2 * ((r - 1) % 2), 2))
                a.v_cndmask_b32(V(MF + r - 1), p, u, S(12 + 2 * ((r - 1) % 2), 2))
        a.s_mov_b32(S(4), 0x000FFFFF); a.s_mov_b32(S(5), 0x000FFFFF)
        a.wait_tok(self.tok_p1)
        a.s_barrier()
        a.buffer_store_dwordx2(V(vTAG, 2), self.vFLG, sWS, 0, mods='offen sc1')
        self.stamp(4)
        L1, L2 = self.lab('t1'), self.lab('t2')
        a.s_cmp_ge_u32(sCT, 10); a.s_cbranch_scc1(L1)
        sn = a.snapshot(); self.rp_rd2(160, 220); a.s_branch(L2)
        a.label(L1); a.restore(sn); self.rp_rd1(160, 220)
        a.label(L2)
        tok_tail = self.rp_cs(160, 144, 148, 152, sRPS)
        self.take(pf, o['pf2'])
        tailflag = lambda: a.buffer_store_dwordx2(V(vTAG, 2), self.vTF, sWS, 0, mods='offen sc1')
        if o['tfe']:
            a.wait_tok(tok_tail); tailflag()
        self.poll(self.vFL, V(150, 2), 0)
        self.stamp(5); self.fs(2); a.mark('p2')
        def ldq(q):
            a.buffer_load_dwordx4(V(Q1 + 4 * q, 4), self.vQ1, sWS, S(sT0 + 8 + q), mods='offen sc1')
            a.buffer_load_dwordx2(V(Q2 + 4 * q, 2), self.vQ2, sWS, S(sT0 + 8 + q), mods='offen sc1')
        ldk2 = lambda pr: a.buffer_load_dwordx2(A(K2 + 2 * pr, 2), self.vK2, sWS, S(sT0 + 2 * pr), mods='offen sc1')
        ldk1 = lambda tt: a.buffer_load_dwordx4(A(K1 + 4 * tt, 4), self.vK1, sWS, S(sT0 + tt), mods='offen sc1')
        def ldv(tt):
            a.s_mov_b64('exec', S(4, 2))
            for s2 in range(2):
                a.buffer_load_dwordx4(A(VV + 8 * tt + 4 * s2, 4), self.vVV, sWS, S(sT0 + tt), mods=f'offen offset:{640*s2} sc1')
            a.s_mov_b64('exec', -1)
        def q2mask(q):
            for d in range(2):
                a.v_cndmask_b32(V(Q2 + 4 * q + 2 + d), V(Q2 + 4 * q + d), p, S(8, 2))
                a.v_cndmask_b32(V(Q2 + 4 * q + d), p, V(Q2 + 4 * q + d), S(8, 2))
        ldq(1); ldk1(9); ldk2(4); ldk1(8); ldv(9); ldq(0); ldv(8)
        if not o['tfe']: tailflag()
        lds = []
        for pr in range(3, -1, -1):
            lds += [lambda pr=pr: (ldk1(2 * pr + 1), ldk2(pr)), lambda pr=pr: ldv(2 * pr + 1), lambda pr=pr: ldk1(2 * pr), lambda pr=pr: ldv(2 * pr)]
        units = [(1, 9)] + [(q, tt) for tt in range(8, 0, -1) for q in (1, 0)] + [(0, 0)]
        def qk2(q, tt, d, part):
            if part == 0:
                c = V(MF, 16) if tt == q else (V(MD, 16) if tt == q + 8 else 0)
                a.v_mfma_f32_32x32x16_bf16(d, A(K1 + 4 * tt, 4), V(Q1 + 4 * q, 4), c)
            else:
                a.v_mfma_f32_32x32x8_bf16(d, A(K2 + 2 * (tt // 2), 2), V(Q2 + 4 * q + 2 * (tt % 2), 2), d)
        def pv2(q, tt, pb, s2):
            d = V(OA + 16 * q, 16)
            a.v_mfma_f32_32x32x16_bf16(d, A(VV + 8 * tt + 4 * s2, 4), V(pb + 4 * s2, 4), 0 if (tt == q + 8 and s2 == 0) else d)
        qk = lambda ui, part: qk2(*units[ui], V(SB + 16 * (ui % 2), 16), part)
        pv = lambda ui, s2: pv2(*units[ui], PB + 8 * (ui % 2), s2)
        q2mask(1); qk(0, 0); qk(0, 1)
        for ui in range(18):
            sb, pb = SB + 16 * (ui % 2), PB + 8 * (ui % 2)
            def ex(r0):
                for r in range(r0, r0 + 4): a.v_exp_f32(V(sb + r), V(sb + r))
            def cv(r0):
                for r in range(r0, r0 + 4, 2): a.v_cvt_pk_bf16_f32(V(pb + r // 2), V(sb + r), V(sb + r + 1))
            def mem():
                if lds: self.take(lds, 1)
                elif ui >= o['p2pf']: self.take(pf, o['p2n'])
            if ui % 2 == 0: self.fs(2)
            if ui + 1 < 18: qk(ui + 1, 0)
            if ui == 1: q2mask(0)
            ex(0)
            if ui > 0: pv(ui - 1, 1)
            mem()
            ex(4); cv(0)
            if ui + 1 < 18: qk(ui + 1, 1)
            cv(4); ex(8)
            pv(ui, 0)
            mem()
            ex(12); cv(8); cv(12)
            if ui == o['f2u'] - 3: a.buffer_load_dwordx2(V(158, 2), self.vTC, sWS, 0, mods='offen sc1')
            if ui == o['f2u']:
                self.check(self.vTC, V(158, 2), 0)
                w1 = self.pf_w1m; wo = self.pf_wo
                while w1 or wo:
                    pf += wo[:3] + w1[:1]; wo = wo[3:]; w1 = w1[1:]
                pf += self.pf_w1b
            if o['local'] and o['gt'] == ui + 1: a.buffer_load_dword(V(157), self.vTO, sWS, 0, mods='offen sc1')
        pv(17, 1)
        self.stamp(6); self.fs(2)
        a.mark('p2e')
        LO, HI = f2u(2.0 ** -40), f2u(2.0 ** 40)
        Lf, Lb = self.lab('max'), self.lab('maxd')
        a.s_mov_b32(sA, HI - LO if not o['forcefb'] else 0)
        t, u = V(150), V(151)
        a.v_subrev_u32(t, LO, V(OA + 28)); a.v_subrev_u32(u, LO, V(OA + 12))
        a.v_max_u32(t, t, u)
        a.v_cmp_lt_u32('vcc', sA, t)
        a.s_cbranch_vccnz(Lf)
        a.label(Lb)
        def fallback():
            a.label(Lf)
            d = V(SB, 16); mx = V(150)
            for q in range(2):
                a.v_mov_b32(mx, NINF)
                for ps in range(2):
                    Ld = self.lab('fbd')
                    for tt in range(q + 8, q - 1, -1):
                        if tt < 8:
                            a.s_cmp_eq_u32(S(sT0 + tt), OOB); a.s_cbranch_scc1(Ld)
                        qk2(q, tt, d, 0); qk2(q, tt, d, 1)
                        if ps == 0:
                            for r in range(0, 16, 2): a.v_max3_f32(mx, mx, V(SB + r), V(SB + r + 1))
                        else:
                            for r in range(16): a.v_sub_f32(V(SB + r), V(SB + r), mx)
                            for r in range(16): a.v_exp_f32(V(SB + r), V(SB + r))
                            for r in range(0, 16, 2): a.v_cvt_pk_bf16_f32(V(PB + r // 2), V(SB + r), V(SB + r + 1))
                            pv2(q, tt, PB, 0); pv2(q, tt, PB, 1)
                    a.label(Ld)
                    if ps == 0:
                        a.v_mov_b32(V(151), mx); a.v_permlane32_swap_b32(mx, V(151)); a.v_max_f32(mx, mx, V(151))
            a.s_branch(Lb)
        self.cold.append(fallback)
        lst = []
        for q in (1, 0):
            oa = OA + 16 * q
            a.v_rcp_f32(V(oa + 14), V(oa + 12))
            for r in range(0, 12, 2):
                a.v_pk_mul_f32(V(oa + r, 2), V(oa + r, 2), V(oa + 14, 2), mods='op_sel_hi:[1,0]')
            for r in range(0, 12, 2):
                a.v_cvt_pk_bf16_f32(V(SB + 8 * q + r // 2), V(oa + r), V(oa + r + 1))
            lst.append(('buffer_store_dwordx4', V(SB + 8 * q, 4), self.vQ1, S(sT0 + 8 + q), 0))
            lst.append(('buffer_store_dwordx2', V(SB + 8 * q + 4, 2), self.vO2, S(sT0 + 8 + q), 0))
        self.tok_p2 = self.stores(lst)
        self.pf_rest = pf

    def sk_setup_s(self, xoff, sbase_k, oob):
        a = self.a
        for ps in range(4):
            a.s_add_u32(sA, sW, ps + 1); a.s_and_b32(sA, sA, 3)
            if ps < 3:
                a.s_mul_i32(sB, sA, 15360); a.s_add_u32(S(12 + ps), sB, REDB + ps * 5120)
            a.s_lshr_b32(sB, sA, 1); a.s_mul_i32(sB, sB, REC); a.s_and_b32(sA, sA, 1); a.s_lshl_b32(sA, sA, 8)
            a.s_add_u32(sA, sA, sB); a.s_add_u32(sA, sA, sTT0)
            if xoff: a.s_add_u32(sA, sA, xoff)
            a.s_add_u32(S(sT0 + ps), sA, sbase_k)
            if oob:
                a.s_cmp_eq_u32(sW, 3); a.s_cselect_b32(S(sT0 + 4 + ps), OOB, S(sT0 + ps))
        a.s_mul_i32(sB, sW, 15360); a.s_add_u32(S(15), sB, REDB)

    def sk_setup_v(self):
        a = self.a
        for ps in range(4): a.v_add_u32(V(28 + ps), S(12 + ps), vL16)

    SK_FR, SK_NR, SK_ACC, SK_R, SK_P = 32, 12, 80, 160, 180

    def sk_seq(self, early, late):
        return [(0, ps, k) for ps in range(4) for k in early] + [(1, ps, k) for ps in range(4) for k in late]

    def sk_ld(self, seq, n):
        rnd, ps, k = seq[n]
        so = S(sT0 + 4 + ps) if k >= 12 else S(sT0 + ps)
        self.a.buffer_load_dwordx4(V(self.SK_FR + 4 * (n % self.SK_NR), 4), V(20 + k // 2), sWS, so, mods=f'offen offset:{2048*(k%2)} sc1')

    def sk_main(self, seq, wfrag, depth, scale, hooks, fill, ph):
        a = self.a
        FR, NR, ACC, R, P = self.SK_FR, self.SK_NR, self.SK_ACC, self.SK_R, self.SK_P
        nl = len([e for e in seq if e[0] == 1]) // 4
        seen = set(); wq = []; q = []
        def rd(p, dst): return a.capture(lambda: [a.ds_read_b128(V(dst + 4 * i, 4), V(31), mods=f'offset:{5120*p + 1024*i}') for i in range(5)])
        def ad(src):
            if scale is None: return a.capture(lambda: [a.v_add_f32(V(R + r), V(R + r), V(src + r)) for r in range(20)])
            return a.capture(lambda: [a.v_fmac_f32(V(R + r), scale, V(src + r)) for r in range(20)])
        g = 0
        for n, (rnd, ps, k) in enumerate(seq):
            first = (rnd, ps) not in seen; seen.add((rnd, ps))
            if first: self.fs(ph); g = 0
            if n in hooks: hooks[n]()
            if first and rnd == 1 and ps > 0:
                assert not wq
                if ps >= 2 or ph == 5:
                    a.waitcnt(lg=0); a.s_barrier()
                wq = [(lambda t=t, ps=ps: a.ds_write_b128(V(28 + ps - 1), V(ACC + 20 * (ps - 1) + 4 * t, 4), mods=f'offset:{1024*t}')) for t in range(5)]
                if ps >= 2: q += rd(ps - 2, P + 20 * (ps - 2)) + [None] * 3 + ad(P + 20 * (ps - 2))
            step = 3 if (rnd == 1 and ps == 3) else 5
            for t in range(5):
                d = V(ACC + 20 * ps + 4 * t, 4)
                init = (ps, k) == (ps, [e for e in seq if e[1] == ps][0][2]) and rnd == [e for e in seq if e[1] == ps][0][0]
                a.v_mfma_f32_16x16x32_bf16(d, wfrag(k, t), V(FR + 4 * (n % NR), 4), 0 if init else d)
                g += 1
                if t == 0 and n + depth < len(seq): self.sk_ld(seq, n + depth)
                if t == 4 and n + 1 < len(seq): a.need(V(FR + 4 * ((n + 1) % NR), 4), *[wfrag(seq[n + 1][2], tt) for tt in range(5)])
                if wq and g >= 3 and (g - 3) % step == 0:
                    wq.pop(0)()
                    if not wq and ps == 3: self.last_g = g + 3
                elif rnd == 1 and ps == 3 and not wq and g == self.last_g:
                    while q and q[0] is not None and any(x is None for x in q): q.pop(0)()
                    assert len(q) <= 23
                    a.waitcnt(lg=0); a.s_barrier()
                    for f in rd(2, P): f()
                else:
                    fill(n, t)
                    a.fill(q, 8)
        while q:
            f = q.pop(0)
            if f: f()
        self.fs(ph)
        acc = ACC + 60
        for r in range(0, 20, 2): a.v_pk_add_f32(V(acc + r, 2), V(acc + r, 2), V(P + r, 2))
        for r in range(0, 20, 2):
            if scale is None: a.v_pk_add_f32(V(acc + r, 2), V(acc + r, 2), V(R + r, 2))
            else: a.v_pk_fma_f32(V(acc + r, 2), V(acc + r, 2), S(16, 2), V(R + r, 2))
        for d in range(10): a.v_cvt_pk_bf16_f32(V(vHR + d), V(acc + 2 * d), V(acc + 2 * d + 1))

    def unpack_res(self):
        a = self.a
        for d in range(10):
            a.v_lshlrev_b32(V(self.SK_R + 2 * d), 16, V(vHR + d))
            a.v_and_b32(V(self.SK_R + 2 * d + 1), sHI, V(vHR + d))

    def p3(self):
        a = self.a; o = self.o
        a.mark('h2')
        t, u, qa, qs = V(16), V(17), V(26), V(27)
        TG = 222
        self.take(self.pf_rest, o['h2a'])
        self.tagv(TG)
        a.s_and_b32(sA, sS, 24); a.s_lshl_b32(sB, sW, 1); a.s_add_u32(sA, sA, sB)
        a.v_bfe_u32(t, vL, 2, 1); a.v_add_u32(t, sA, t); a.v_lshlrev_b32(t, 3, t); a.v_add_u32(t, sJ, t)
        a.v_and_b32(u, 3, vL); a.v_lshlrev_b32(u, 3, u); a.v_lshl_add_u32(t, t, 7, u); a.v_add_u32(V(18), FLAGL, t)
        a.s_mul_i32(S(71), sW, 10240)
        self.sk_setup_s(OO, S(71), False)
        self.publish(self.tok_p2, 0, TG)
        self.stamp(7)
        while len(self.pf_rest) > len(self.pf_w1b): self.take(self.pf_rest, 1)
        mix = []
        while self.pf_rest:
            mix.append(self.pf_rest.pop(0))
            if o['mix']: mix += self.pf_w2[:o['mix']]; self.pf_w2 = self.pf_w2[o['mix']:]
        self.nmix = len(mix) - o['w2b'] - o['w2p3']
        self.pf_w2 = mix + self.pf_w2
        self.take(self.pf_w2, o['w2b'])
        self.sk_setup_v()
        a.v_lshrrev_b32(t, 4, vL); a.v_lshlrev_b32(t, 9, t); a.v_and_b32(u, 15, vL); a.v_lshl_add_u32(V(20), u, 4, t)
        for k in range(1, 3): a.v_add_u32(V(20 + k), 4096 * k, V(20))
        self.unpack_res()
        a.s_mul_i32(sE, sHG, 5120); a.s_add_u32(sE, sE, OH - OO); a.s_add_u32(sE, sE, S(sT0 + 3)); a.s_sub_u32(sE, sE, S(71))
        a.v_lshrrev_b32(qa, 5, vL); a.v_lshlrev_b32(qa, 9, qa); a.v_bfe_u32(t, vL, 4, 1); a.v_lshl_add_u32(qa, t, 3, qa)
        a.v_lshl_add_u32(qa, u, 4, qa); a.v_add_u32(qa, 4096, qa)
        a.s_lshl_b32(sB, sJ, 4); a.s_lshr_b32(sC, sS, 3); a.s_lshl_b32(sC, sC, 2); a.s_add_u32(sB, sB, sC); a.s_add_u32(sB, sB, sW)
        a.s_lshl_b32(sB, sB, 10); a.s_lshl_b32(sC, sHG, 7); a.s_add_u32(sB, sB, sC); a.s_add_u32(sF, sB, STATS)
        a.v_lshlrev_b32(t, 3, vL); a.v_mov_b32(qs, OOB); a.v_cmp_gt_u32('vcc', 16, vL); a.v_cndmask_b32(qs, qs, t, 'vcc')
        sm, sq = 24, 25
        a.v_mov_b32(V(sm), 0); a.v_mov_b32(V(sq), 0); a.v_mov_b32(V(23), ONES)
        self.poll(V(18), V(16, 2), 0)
        self.stamp(8); self.fs(3); a.mark('p3')
        seq = self.sk_seq([], range(5))
        for n in range(o['d3']): self.sk_ld(seq, n)
        nw = [o['w2p3'], -1]
        def fill(n, t):
            if t in (0, 1) and n >= 20 - o['d3'] and nw[0] > 0 and nw[1] != n:
                nw[0] -= 1; nw[1] = n; self.take(self.pf_w2, 1)
        hooks = {}
        self.sk_main(seq, lambda k, t: A(132 + 4 * (5 * k + t), 4), o['d3'], None, hooks, fill, 3)
        self.take(self.pf_w2, nw[0] + max(0, self.nmix))
        self.stores([('buffer_store_dwordx4', V(vHR, 4), V(20), sE, 0),
                     ('buffer_store_dwordx4', V(vHR + 4, 4), V(20), sE, 2048),
                     ('buffer_store_dwordx2', V(vHR + 8, 2), qa, sE, 0)])
        for d in range(10):
            a.v_dot2c_f32_bf16(V(sm), V(vHR + d), V(23))
            a.v_dot2c_f32_bf16(V(sq), V(vHR + d), V(vHR + d))
        a.v_permlane32_swap_b32(V(sm), V(sq))
        a.v_add_f32(V(sm), V(sm), V(sq))
        a.v_mov_b32(V(sq), V(sm))
        a.v_permlane16_swap_b32(V(sm), V(sq))
        a.v_add_f32(V(sm), V(sm), V(sq))
        a.v_mov_b32(V(sq), V(sm))
        a.v_permlane32_swap_b32(V(sm), V(sq))
        self.tok_p3 = self.stores([('buffer_store_dwordx2', V(sm, 2), qs, sF, 0)])
        self.stamp(9); self.fs(3)

    def p4(self):
        a = self.a; o = self.o
        a.mark('h3')
        NV = 32
        HF, EXT, ACC, BF, TMP, OUT = 16, 144, 152, 192, 224, 240
        NB = 7; TG = 222
        vds = [V(248), V(249), V(250)]; vh, al, st = V(251), 252, 254
        ve = V(220)
        hreg = lambda ks, f: (V(HF + 4 * (2 * ks + f - 8), 4) if ks >= 4 else A(224 + 4 * (2 * ks + f), 4)) if ks < 20 else V(EXT + 4 * f, 4)
        t, u = V(TMP), V(TMP + 1)
        w2 = self.pf_w2
        self.take(w2, o['w2c'])
        a.s_add_u32(sA, sW4K, REDB); a.v_add_u32(V(16), sA, vL16)
        a.s_add_u32(sA, S(45), 1024 * w1_slot(4, 10)); a.v_add_u32(V(17), sA, vL16)
        a.s_barrier()
        stg = [(lambda n=n: a.ds_write_b128(V(16 if n < 4 else 17), self.w1breg[n],
                                            mods=f'offset:{1024*(n if n < 4 else 11*((n-4)//3) + (n-4)%3)}')) for n in range(13)]
        self.take(stg, 7)
        a.v_mov_b32(vh, V(20))
        a.v_lshrrev_b32(V(st), 1, vh)
        for i in range(3): a.v_add_u32(vds[i], 57344 * i, vL16)
        a.s_lshl_b32(sA, sJ, 3); a.s_lshr_b32(sB, sS, 4); a.s_lshl_b32(sB, sB, 2); a.s_add_u32(sA, sA, sB); a.s_add_u32(sC, sA, sW)
        a.s_mul_i32(sA, sC, REC)
        for i in range(10): a.s_add_u32(S(sT0 + i), sA, OH + 4096 * i)
        a.s_and_b32(sB, sS, 16); a.s_lshr_b32(S(7), sW, 1); a.s_lshl_b32(S(7), S(7), 3); a.s_add_u32(sB, sB, S(7))
        a.v_and_b32(t, 7, vL); a.v_add_u32(t, sB, t); a.v_lshlrev_b32(t, 3, t); a.v_add_u32(t, sJ, t)
        a.s_and_b32(sB, sW, 1); a.s_lshl_b32(sB, sB, 4); a.s_add_u32(sB, sB, FLAGL)
        a.v_and_b32(u, 8, vL); a.v_lshl_add_u32(t, t, 7, u); a.v_add_u32(V(TMP + 4), sB, t)
        self.publish(self.tok_p3, 32, TG)
        self.take(w2, o['w2d'])
        self.take(stg, 6)
        a.s_lshl_b32(sB, sC, 11); a.s_add_u32(sE, sB, STATS)
        a.s_add_u32(sA, sA, OG)
        a.s_lshl_b32(sB, S(63), 10); a.s_add_u32(S(71), sB, sA)
        a.s_lshl_b32(sB, S(69), 10); a.s_add_u32(sF, sB, sA)
        a.s_and_b32(sB, sS, 16); a.s_lshl_b32(sC, sW, 2); a.s_add_u32(sB, sB, sC)
        a.v_and_b32(t, 3, vL); a.v_add_u32(t, sB, t); a.v_lshlrev_b32(t, 3, t); a.v_add_u32(t, sJ, t)
        a.s_and_b32(sB, sS, 8); a.s_lshl_b32(sB, sB, 1); a.s_add_u32(sB, sB, FLAGL)
        a.v_and_b32(u, 8, vL); a.v_lshl_add_u32(t, t, 7, u); a.v_add_u32(ve, sB, t)
        accb = {0: 0, 1: 8, 2: 16, 3: 24, 4: 32, 5: 0, 6: 8}
        seq = [(ks, T) for ks in range(21) for T in range(4)] + [(ks, T) for T in range(4, 7) for ks in range(21)]
        def rd(n):
            ks, T = seq[n]; off = w1_slot(T, ks) * 1024
            a.ds_read_b128(V(BF + 4 * (n % NB), 4), vds[off // 57344], mods=f'offset:{off % 57344}')
        for n in range(NB - 1): rd(n)
        self.poll(V(TMP + 4), V(TMP + 2, 2), 32)
        self.stamp(10); self.fs(4); a.mark('p4a')
        hl = [(lambda ks=ks, f=f: a.buffer_load_dwordx4(hreg(ks, f), vh, sWS, S(sT0 + ks // 2), mods=f'offen offset:{256*f + 2048*(ks%2)} sc1'))
              for ks in range(20) for f in range(2)]
        sl = [(lambda f=f, e=e: a.buffer_load_dwordx2(V(TMP + 4 * f + 2 * e, 2), V(st), sWS, sE, mods=f'offen offset:{1024*f + 128*e} sc1'))
              for f in range(2) for e in range(2)]
        self.take(hl, o['d4'])
        a.s_cmp_lg_u32(sPURE, 0); a.s_cselect_b64('vcc', -1, 0)
        def stat():
            for f in range(2):
                b = TMP + 4 * f
                a.v_add_f32(V(b), V(b), V(b + 2)); a.v_add_f32(V(b + 1), V(b + 1), V(b + 3))
            for op in ('v_permlane16_swap_b32', 'v_permlane32_swap_b32'):
                for f in range(2):
                    b = TMP + 4 * f
                    a.v_mov_b32(V(b + 2), V(b)); a.v_mov_b32(V(b + 3), V(b + 1))
                for f in range(2):
                    b = TMP + 4 * f
                    a.I(op, V(b), V(b + 2)); a.I(op, V(b + 1), V(b + 3))
                for f in range(2):
                    b = TMP + 4 * f
                    a.v_add_f32(V(b), V(b), V(b + 2)); a.v_add_f32(V(b + 1), V(b + 1), V(b + 3))
            for f in range(2):
                b = TMP + 4 * f; e = EXT + 4 * f
                a.v_mul_f32(V(b), f2u(-1.0 / 640), V(b))
                a.v_mul_f32(V(b + 1), f2u(1.0 / 640), V(b + 1))
                a.v_fma_f32(V(b + 1), '-' + V(b), V(b), V(b + 1))
                a.v_max_f32(V(b + 1), 0, V(b + 1))
                a.v_add_f32(V(b + 1), f2u(1e-5), V(b + 1))
                a.v_rsq_f32(V(b + 1), V(b + 1))
                a.v_cvt_pk_bf16_f32(V(e), V(b), V(b))
                a.v_mul_f32(V(al + f), f2u(-LOG2E), V(b + 1))
                a.v_and_b32(V(b + 2), sHI, V(e))
                a.v_sub_f32(V(b + 2), V(b), V(b + 2))
                a.v_mov_b32(V(e + 2), 0); a.v_mov_b32(V(e + 3), 0)
                a.v_cvt_pk_bf16_f32(V(e + 1), V(b + 2), V(e + 2))
        toks = {}
        def epi(T, pk=False):
            ob = OUT + 4 * (T % 2)
            def body():
                for f in range(2):
                    ac = ACC + accb[T] + 4 * f; tm = TMP + 8 + 4 * f
                    if pk:
                        for c in (0, 2): a.v_pk_mul_f32(V(ac + c, 2), V(ac + c, 2), V(al, 2), mods=f'op_sel:[0,{f}] op_sel_hi:[1,{f}]')
                    else:
                        for c in range(4): a.v_mul_f32(V(ac + c), V(ac + c), V(al + f))
                    for c in range(4): a.v_exp_f32(V(tm + c), V(ac + c))
                    if pk:
                        for c in (0, 2): a.v_pk_add_f32(V(tm + c, 2), V(tm + c, 2), 1.0, mods='op_sel_hi:[1,0]')
                    else:
                        for c in range(4): a.v_add_f32(V(tm + c), 1.0, V(tm + c))
                    for c in range(4): a.v_rcp_f32(V(tm + c), V(tm + c))
                    if pk:
                        for c in (0, 2): a.v_pk_mul_f32(V(tm + c, 2), V(ac + c, 2), V(tm + c, 2))
                    else:
                        for c in range(4): a.v_mul_f32(V(tm + c), V(ac + c), V(tm + c))
                    for c in range(2): a.v_cvt_pk_bf16_f32(V(ob + 2 * f + c), V(tm + 2 * c), V(tm + 2 * c + 1))
            e = a.capture(body) + [None]
            e += a.capture(lambda: [a.v_permlane16_swap_b32(V(ob + c), V(ob + 2 + c)) for c in range(2)])
            def st_(): toks[T] = self.stores([('buffer_store_dwordx4', V(ob, 4), vL16, S(71) if T < 4 else sF, 1024 * (T % 4))], wt=True)
            st_.cost = 12
            return e + [st_]
        def flush(q):
            while q:
                g = q.pop(0)
                if g: g()
        side = []; mem = []
        nh = 2 * (40 - o['d4'])
        for n, (ks, T) in enumerate(seq):
            if n in (1, 24, 56, 84, 105, 126): self.fs(4)
            if n == 84: a.mark('p4b')
            if n == o['s4']: side = a.capture(stat)
            if n == 80: flush(side)
            if n == 85: side = epi(0) + epi(1) + epi(2) + epi(3)
            if n == 105: flush(side)
            if n == 107:
                side = epi(4) + a.capture(lambda: (a.s_lshl_b32(S(7), S(67), 11), a.s_add_u32(S(7), S(7), OG), self.sk_setup_s(0, S(7), True)))
            if n == 126: flush(side)
            if n == 128: side = epi(5)
            if n == o['e4']: self.publish(toks[3], 96, TG, vcc=True)
            if n == o['e4c']: a.buffer_load_dwordx2(V(TMP, 2), ve, sWS, 0, mods='offen offset:96 sc1')
            m = n + NB - 1
            if m == 68: a.s_barrier()
            bud = 8 if n < 84 else (o['b4'] if n < 105 else 12)
            for f in range(2):
                d = V(ACC + accb[T] + 4 * f, 4)
                a.v_mfma_f32_16x16x32_bf16(d, V(BF + 4 * (n % NB), 4), hreg(ks, f), d if ks else 0)
                if f == 0:
                    if m < len(seq): rd(m)
                    if n % 2 == 0:
                        if hl: self.take(hl, 1)
                        elif mem: mem.pop(0)()
                        elif len(w2) > (14 if n < 130 else 6) and n % o['w2s'] < 2: self.take(w2, 1)
                    elif sl and n >= o['s4'] - 14: self.take(sl, 1)
                elif n % 2 == 1 and n + 1 < len(seq):
                    nn = [x for x in (n + 1, n + 2) if x < len(seq)]
                    a.need(*[V(BF + 4 * (x % NB), 4) for x in nn], *[hreg(seq[x][0], ff) for x in nn for ff in range(2)])
                a.fill(side, bud)
        self.fs(4); a.mark('p4c')
        flush(side)
        assert not mem
        for k in range(7): a.v_add_u32(V(20 + k), 4096 * k, vh)
        self.check(ve, V(TMP, 2), 96, pair=S(4, 2))
        self.seq5 = self.sk_seq(KE, KL)
        for n in range(o['d5']): self.sk_ld(self.seq5, n)
        flush(epi(6, True))
        self.tok_p4 = toks[6]
        self.ve = ve; self.TG = TG
        self.stamp(11); self.fs(4)

    def p5(self):
        a = self.a; o = self.o
        a.mark('p5')
        self.stamp(12); self.fs(5)
        w2 = self.pf_w2
        c = f2u(-math.log(2.0))
        extra = a.capture(lambda: (a.s_mov_b32(S(16), c), a.s_mov_b32(S(17), c), self.sk_setup_v(), self.unpack_res(),
                                   a.v_and_b32(V(18), 15, vL), a.v_mul_u32_u24(V(18), 1280, V(18)), a.v_lshrrev_b32(V(19), 4, vL),
                                   a.v_lshl_add_u32(V(15), V(19), 4, V(18)), a.v_lshl_add_u32(V(3), V(19), 3, V(18))))
        def fill(n, t):
            if t == 2 and w2 and n % o['w2t'] == 0: self.take(w2, 1)
            a.fill(extra, 8)
        d5 = o['d5']
        hooks = {o['l5']: lambda: self.publish(self.tok_p4, 64, self.TG, vcc=True),
                 32 - d5 - o['l5c']: lambda: a.buffer_load_dwordx2(V(16, 2), self.ve, sWS, 0, mods='offen offset:64 sc1'),
                 32 - d5: lambda: self.check(self.ve, V(16, 2), 64, pair=S(4, 2)),
                 31: lambda: self.take(w2, 99)}
        print('W2 fragments left for the last phase:', len(w2)); assert len(w2) <= 30
        self.sk_main(self.seq5, lambda k, t: self.w2reg[(k, t)], d5, S(16), hooks, fill, 5)
        assert not extra
        self.fs(5)
        a.buffer_store_dwordx4(V(vHR, 4), V(15), sOUT, S(70), mods='offen')
        a.buffer_store_dwordx4(V(vHR + 4, 4), V(15), sOUT, S(70), mods='offen offset:64')
        a.buffer_store_dwordx2(V(vHR + 8, 2), V(3), sOUT, S(70), mods='offen offset:128')
        self.stamp(13); self.fs(5)
        a.mark('end')

    def finish(self):
        a = self.a
        if self.o['diag']:
            a.waitcnt(vm=0)
            self.stamp(14)
            a.s_lshl_b32(sA, S(2), 2); a.s_add_u32(sA, sA, sW); a.s_lshl_b32(sA, sA, 6); a.s_add_u32(sA, sA, STAMPS)
            a.s_memtime(S(100, 2))
            a.s_sub_u32(S(sST0 + 15), S(100), S(3))
            a.v_mov_b32(V(20), 0)
            for i in range(16):
                a.v_mov_b32(V(21), S(sST0 + i))
                a.buffer_store_dword(V(21), V(20), sWS, sA, mods=f'offen offset:{4*i}')
        a.label('L_end')
        a.s_endpgm()
        k = 0
        while k < len(self.ool):
            a.vmq, a.lgq = [], []
            self.ool[k](); k += 1
        a.label('L_codeend')
        for f in self.cold:
            a.vmq, a.lgq = [], []
            f()

    def build(self):
        st = self.o['stop']
        if self.o['diag']:
            for i in range(16): self.a.s_mov_b32(S(sST0 + i), 0)
            self.a.s_mov_b32(sPURE, 0)
        self.prologue()
        self.p1()
        if st >= 2: self.p2()
        if st >= 3: self.p3()
        if st >= 4: self.p4()
        if st >= 5: self.p5()
        self.finish()
        nops = self.a.fix_hazards()
        print(self.a.report())
        head = open("cdna_kernels/" + NAME + ".s.ref").read().split("; Override launch")[0]
        src = head + f"; @launch grid=(256,1,1) block=(256,1,1) lds={LDS_SIZE}\n"
        src += f'.amdgcn_target "amdgcn-amd-amdhsa--gfx950"\n.text\n.globl {NAME}_kernel\n.p2align 8\n.type {NAME}_kernel,@function\n{NAME}_kernel:\n'
        src += self.a.text()
        src += f""".section .rodata,"a"
.p2align 6
.amdhsa_kernel {NAME}_kernel
  .amdhsa_next_free_vgpr 512
  .amdhsa_next_free_sgpr 102
  .amdhsa_accum_offset 256
  .amdhsa_group_segment_fixed_size 0
  .amdhsa_kernarg_size 72
  .amdhsa_user_sgpr_count 2
  .amdhsa_user_sgpr_kernarg_segment_ptr 1
  .amdhsa_system_sgpr_workgroup_id_x 1
.end_amdhsa_kernel
"""
        return src, nops


if __name__ == "__main__":
    opt = {}
    out = "cdna_kernels/" + NAME + ".s"
    for x in sys.argv[1:]:
        k, v = x.split("=")
        if k == "out": out = v
        else: opt[k] = int(v)
    src, nops = Gen(**opt).build()
    open(out, "w").write(src)
    print("wrote", out, "lines", src.count("\n"), "nop states", nops)
```
